```python
import torch

def _softmax(x, axis=-1):
    return torch.softmax(x, dim=axis)
def _gelu(x):
    return torch.nn.functional.gelu(x, approximate="tanh")
def _silu(x):
    return torch.nn.functional.silu(x)
def _sigmoid(x):
    return torch.sigmoid(x)
def _layernorm(x, axis=-1, eps=1e-5):
    m = x.mean(dim=axis, keepdim=True)
    v = x.var(dim=axis, keepdim=True, unbiased=False)
    return (x - m) / torch.sqrt(v + eps)
def _scatter_add(tgt, idx, src, axis=0):
    return tgt.clone().index_add_(axis, idx, src)
def _segment_sum(src, seg, n):
    out = torch.zeros((n,) + src.shape[1:], dtype=src.dtype)
    return out.index_add_(0, seg, src)
def _pad(x, pw):
    flat = tuple(v for pair in reversed(pw) for v in pair)
    return torch.nn.functional.pad(x, flat)

kernel_name = 'standalone__cheap_equivariant_egnn__graph'

def setup_inputs():

    _w = (lambda a: (lambda t: t.to(torch.bfloat16) if t.is_floating_point() else t)(torch.as_tensor(a)))
    N, deg, D, De = 10000, 16, 256, max(0, 1)
    E = N * deg
    return {
        "h": _w((lambda *s: torch.randn(*s, dtype=torch.bfloat16) * 0.2)(N, D)),
        "pos": _w((lambda *s: torch.randn(*s, dtype=torch.bfloat16) * 0.8)(N, 3)),
        "e_attr": _w((lambda *s: torch.randn(*s, dtype=torch.bfloat16) * 0.8)(E, De)),
        "src": _w((lambda lo, hi, *s: torch.randint(lo, hi, s))(0, N, E).to(torch.int64)),
        "dst": _w((lambda lo, hi, *s: torch.randint(lo, hi, s))(0, N, E).to(torch.int64)),
        "w_e": _w(0.1 * (lambda *s: torch.randn(*s, dtype=torch.bfloat16) * 0.8)(2 * D + 1 + De, D)),
        "w_x": _w(0.1 * (lambda *s: torch.randn(*s, dtype=torch.bfloat16) * 0.2)(D, 1)),
        "w_h": _w(0.1 * (lambda *s: torch.randn(*s, dtype=torch.bfloat16) * 0.2)(2 * D, D)),
    }

def reference(h, pos, e_attr, src, dst, w_e, w_x, w_h):
    N, D = h.shape[0], h.shape[1]
    diff = pos[dst] - pos[src]
    dist2 = torch.sum(diff * diff, axis=-1, keepdims=True)
    e_in = torch.concatenate([h[dst], h[src], dist2, e_attr], axis=-1)
    m_ij = _silu(e_in @ w_e)
    coord_scale = m_ij @ w_x
    pos_new = pos + _segment_sum(diff * coord_scale, dst, N)
    m_i = _segment_sum(m_ij, dst, N)
    h_new = h + _silu(torch.concatenate([h, m_i], axis=-1) @ w_h)
    return h_new, pos_new
```

```python
import re

class Asm:
    def __init__(self):
        self.lines = []
    def __call__(self, s):
        for l in s.split("\n"):
            l = l.strip()
            if l:
                self.lines.append(l)
    def label(self, n):
        self.lines.append(n + ":")
    def nop(self, n):
        while n > 0:
            k = min(n, 16)
            self("s_nop %d" % (k - 1))
            n -= k
    def text(self):
        out = []
        for l in self.lines:
            if l.endswith(":") or l.startswith(".") or l.startswith(";"):
                out.append(l)
            else:
                out.append("    " + l)
        return "\n".join(out) + "\n"

def v(n, c=1):
    return "v%d" % n if c == 1 else "v[%d:%d]" % (n, n + c - 1)
def a(n, c=1):
    return "a%d" % n if c == 1 else "a[%d:%d]" % (n, n + c - 1)
def s(n, c=1):
    return "s%d" % n if c == 1 else "s[%d:%d]" % (n, n + c - 1)

REG = re.compile(r"^-?(?:abs\()?\|?([vas])(?:(\d+)|\[(\d+):(\d+)\])\)?\|?$")
def regs(op):
    op = op.strip()
    if op == "vcc":
        return {("s", "vcc")}
    if op == "exec":
        return {("s", "exec")}
    if op == "m0":
        return {("s", "m0")}
    m = REG.match(op)
    if not m:
        return set()
    k = m.group(1)
    if m.group(2) is not None:
        return {(k, int(m.group(2)))}
    return {(k, i) for i in range(int(m.group(3)), int(m.group(4)) + 1)}

TRANS = ("v_exp_f32", "v_rcp_f32", "v_log_f32", "v_rsq_f32", "v_sqrt_f32")
def parse(l):
    l = l.split(";")[0].strip()
    parts = l.split(None, 1)
    op = parts[0]
    rest = parts[1] if len(parts) > 1 else ""
    toks = [t.strip() for t in rest.split(",")] if rest else []
    ops = []
    for t in toks:
        ops.append(t.split()[0] if t.split() else t)
    d = dict(op=op, w=set(), r=set(), cls="other", passes=0, srcc=set(), dpp=("row_" in l or "quad_perm" in l or "wave_" in l), data=set(), states=1)
    R = [regs(o) for o in ops]
    if op == "s_nop":
        d["cls"] = "nop"; d["states"] = int(ops[0]) + 1
    elif op.startswith("v_mfma"):
        d["cls"] = "mfma"; d["w"] = R[0]; d["r"] = R[1] | R[2] | R[3]; d["srcc"] = R[3]; d["ab"] = R[1] | R[2]
        d["passes"] = 4 if "16x16" in op else (2 if "4x4x4" in op else 8)
    elif op.startswith("v_cmp"):
        d["cls"] = "valu"; d["w"] = R[0]; d["r"] = set().union(*R[1:])
    elif op.startswith("v_readfirstlane") or op.startswith("v_readlane"):
        d["cls"] = "valu"; d["w"] = R[0]; d["r"] = set().union(*R[1:]); d["rl"] = True
    elif op.startswith("v_"):
        d["cls"] = "valu"; d["w"] = set(R[0]); d["r"] = set().union(*R[1:]) if len(R) > 1 else set()
        if op.startswith(("v_fmac", "v_pk_fmac", "v_writelane")) or d["dpp"] or "permlane" in op:
            d["r"] |= R[0]
        if "permlane" in op:
            d["w"] |= R[1]
        if op.startswith(("v_add_co", "v_sub_co", "v_addc_co")):
            d["w"] |= R[1]
        if op.startswith(TRANS):
            d["trans"] = True
    elif op.startswith("ds_"):
        d["cls"] = "ds"
        if op.startswith("ds_read") or "_rtn" in op or "permute" in op or "swizzle" in op:
            d["w"] = R[0]; d["r"] = set().union(*R[1:]) if len(R) > 1 else set()
        else:
            d["r"] = set().union(*R)
    elif op.startswith(("buffer_", "global_")):
        d["cls"] = "vmem"
        if "load" in op:
            d["w"] = R[0]; d["r"] = set().union(*R[1:])
        else:
            d["r"] = set().union(*R)
            if "x4" in op or "x3" in op:
                d["data"] = R[0] if op.startswith("buffer_") else R[1]
    elif op.startswith("s_"):
        d["cls"] = "salu"
        if op.startswith(("s_cmp", "s_cbranch", "s_branch", "s_waitcnt", "s_barrier", "s_setpc", "s_endpgm", "s_setprio", "s_sleep", "s_bitcmp")):
            d["r"] = set().union(*R) if R else set()
        else:
            d["w"] = R[0] if R else set(); d["r"] = set().union(*R[1:]) if len(R) > 1 else set()
            if "saveexec" in op:
                d["w"] = d["w"] | {("s", "exec")}
    return d

def need(p, c):
    n = 0
    vw = {x for x in p["w"] if x[0] in "va"}
    sw = {x for x in p["w"] if x[0] == "s"}
    if p["cls"] == "valu":
        if c["cls"] == "mfma" and vw & c["r"]: n = max(n, 2)
        if c["cls"] == "valu":
            if p.get("trans") and vw & c["r"] and not c.get("trans"): n = max(n, 1)
            if c["dpp"] and vw & c["r"]: n = max(n, 2)
            if "permlane" in c["op"] and vw & c["r"]: n = max(n, 2)
            if c.get("rl") and vw & c["r"]: n = max(n, 1)
            if sw & c["r"]: n = max(n, 4 if c.get("rl") or "writelane" in c["op"] else 2)
        if c["cls"] == "vmem" and sw & c["r"]: n = max(n, 5)
    if p["cls"] == "mfma":
        tab_valu = {2: 5, 4: 8, 8: 12}[p["passes"]]
        if c["cls"] == "mfma":
            if vw & c["ab"]: n = max(n, tab_valu)
            if vw & c["srcc"]:
                same = (c["srcc"] == p["w"] and c["op"] == p["op"])
                n = max(n, (2 if p["passes"] == 2 else 0) if same else {2: 4, 4: 6, 8: 10}[p["passes"]])
            elif vw & c["w"]:
                n = max(n, {2: 4, 4: 6, 8: 10}[p["passes"]])
        elif c["cls"] in ("valu", "ds", "vmem"):
            if vw & (c["r"] | c["w"]): n = max(n, tab_valu)
            if c["cls"] == "valu" and p["srcc"] & c["w"]: n = max(n, {2: 1, 4: 3, 8: 7}[p["passes"]])
    if p["cls"] == "vmem" and p["data"] and c["cls"] in ("valu", "mfma") and p["data"] & c["w"]:
        n = max(n, 2)
    if p["cls"] == "salu" and ("s", "m0") in p["w"] and (c["op"].startswith("s_movrel") or (c["cls"] in ("vmem", "ds") and " lds" in c.get("text", ""))):
        n = max(n, 1)
    return n

def check(lines, window=24):
    ins, labels = [], {}
    for l in lines:
        if l.startswith(";") or l.startswith("."):
            continue
        if l.endswith(":"):
            labels[l[:-1]] = len(ins); continue
        d = parse(l); d["text"] = l; ins.append(d)
    calls = {}
    for i, d in enumerate(ins):
        if d["op"] == "s_call_b64":
            calls.setdefault(d["text"].split(",")[0].split()[1], []).append(i + 1)
    def succ(i):
        d = ins[i]; op = d["op"]
        if op == "s_endpgm": return []
        if op == "s_branch": return [labels[d["text"].split()[1]]]
        if op == "s_call_b64": return [labels[d["text"].split(",")[1].strip()]]
        if op == "s_setpc_b64": return calls.get(d["text"].split()[1], [])
        if op.startswith("s_cbranch"): return [i + 1, labels[d["text"].split()[1]]]
        return [i + 1]
    errs = set()
    for i, p in enumerate(ins):
        if p["cls"] not in ("valu", "mfma", "vmem", "salu"):
            continue
        stack = [(j, 0) for j in succ(i)]
        seen = {}
        while stack:
            j, dist = stack.pop()
            if j >= len(ins) or dist >= window or seen.get(j, 99) <= dist:
                continue
            seen[j] = dist
            c = ins[j]
            n = need(p, c)
            if n > dist:
                errs.add("hazard: need %d have %d: [%s] -> [%s]" % (n, dist, p["text"], c["text"]))
            for k in succ(j):
                stack.append((k, dist + c["states"]))
    return sorted(errs)
```

```python
N, E, D = 10000, 160000, 256
NCH, CH, CHS = 128, 1250, 10240
WS_B    = 4096
WS_POS  = 5124096
WS_OFF  = 5242880
WS_WP   = 5373952
WS_REC  = 5767168
WS_SORT = 7077888
WS_STAMP = 16 << 20
NEG_LOG2E = 0xBFB8AA3B
NEG_LN2   = 0xBF317218
RS = 544
SRDW3 = 0x00020000

def srd(A, r, lo, hi, nrec, off=None, tmp=None):
    if off is None:
        A("s_mov_b32 s%d, s%d" % (r, lo))
        A("s_mov_b32 s%d, s%d" % (r + 1, hi))
    else:
        A("s_add_u32 s%d, s%d, %s" % (r, lo, off))
        A("s_addc_u32 s%d, s%d, 0" % (r + 1, hi))
    A("s_mov_b32 s%d, %s" % (r + 2, nrec))
    A("s_mov_b32 s%d, 0x%x" % (r + 3, SRDW3))
```

```python
import sys
from asmlib import *
from common import *
import k1, k2

HDR = open("standalone__cheap_equivariant_egnn__graph.s.ref").read().split("; Override launch")[0]

def build(stamps=False, X=()):
    A = Asm()
    ks = []
    for nm, g in (("egnn_prep_kernel", lambda n: k1.gen_k1(A, n, stamps, X)), ("egnn_edge_kernel", lambda n: k2.gen_k2(A, n, stamps, X))):
        A(".globl " + nm)
        A(".p2align 8")
        A(".type %s,@function" % nm)
        ks.append((nm, g(nm)))
    errs = check(A.lines)
    for e in errs:
        print(e, file=sys.stderr)
    out = HDR
    out += "; @launch kernel=egnn_prep_kernel grid=(%d,1,1) block=(256,1,1) lds=%d\n" % (k1.K1_GRID, k1.K1_LDS)
    out += "; @launch kernel=egnn_edge_kernel grid=(%d,1,1) block=(512,1,1) lds=%d\n" % (k2.K2_GRID, k2.K2_LDS)
    out += '.amdgcn_target "amdgcn-amd-amdhsa--gfx950"\n.text\n' + A.text()
    out += '.section .rodata,"a"\n'
    for nm, r in ks:
        acc = (r["vgpr"] + 3) // 4 * 4
        out += ".p2align 6\n.amdhsa_kernel %s\n" % nm
        out += "  .amdhsa_next_free_vgpr %d\n  .amdhsa_next_free_sgpr %d\n  .amdhsa_accum_offset %d\n" % (acc + r["agpr"] if r["agpr"] else r["vgpr"], r["sgpr"], acc)
        out += "  .amdhsa_group_segment_fixed_size 0\n  .amdhsa_kernarg_size 88\n  .amdhsa_user_sgpr_count 2\n  .amdhsa_user_sgpr_kernarg_segment_ptr 1\n  .amdhsa_system_sgpr_workgroup_id_x 1\n.end_amdhsa_kernel\n"
    return out, errs

if __name__ == "__main__":
    stamps = "--stamps" in sys.argv
    path = [x for x in sys.argv[1:] if not x.startswith("--")]
    path = path[0] if path else "standalone__cheap_equivariant_egnn__graph.s"
    X = [x[4:] for x in sys.argv if x.startswith('--x=')]
    out, errs = build(stamps, X)
    open(path, "w").write(out)
    print("wrote", path, len(out), "bytes;", len(errs), "hazards")
```

```python
from asmlib import *
from common import *

K1_LDS = 80 * RS
K1_GRID = 384

def wave_scan(A, x):
    for sh in (1, 2, 4, 8):
        A.nop(2)
        A("v_add_u32_dpp v%d, v%d, v%d row_shr:%d row_mask:0xf bank_mask:0xf bound_ctrl:0" % (x, x, x, sh))
    A.nop(2)
    A("v_add_u32_dpp v%d, v%d, v%d row_bcast:15 row_mask:0xa bank_mask:0xf" % (x, x, x))
    A.nop(2)
    A("v_add_u32_dpp v%d, v%d, v%d row_bcast:31 row_mask:0xc bank_mask:0xf" % (x, x, x))

def gen_k1(A, name, stamps=False, X=()):
    L = lambda x: name + "_" + x
    st_n = [0]
    NTH = " nt" if "nth" in X else ""
    NTE = " nt" if "nte" in X else ""
    NTW = " nt" if "ntw" in X else ""
    def stamp(reset=None):
        if not stamps:
            return
        if reset is not None:
            st_n[0] = reset
        A("s_memtime s[50:51]")
        A("s_waitcnt lgkmcnt(0)")
        A("v_writelane_b32 v184, s50, %d" % st_n[0])
        st_n[0] += 1
    def stamp_out():
        if not stamps:
            return
        A("s_waitcnt vmcnt(0)")
        stamp()
        A("s_memrealtime s[50:51]")
        A("s_waitcnt lgkmcnt(0)")
        A("v_writelane_b32 v184, s50, 15")
        A("v_writelane_b32 v184, s56, 14")
        A("s_lshl_b32 s50, s2, 2")
        A("s_add_u32 s50, s50, s3")
        A("s_lshl_b32 s50, s50, 8")
        A("s_add_u32 s50, s50, %d" % (WS_STAMP + (1 << 20)))
        srd(A, 52, 20, 21, 256, "s50")
        A("v_lshlrev_b32 v2, 2, v2")
        A("buffer_store_dword v184, v2, s[52:55], 0 offen")
    A.label(name)
    A("s_cmp_ge_u32 s2, %d" % K1_GRID)
    A("s_cbranch_scc1 " + L("end"))
    if stamps:
        A("s_memrealtime s[56:57]")
    stamp()
    A("s_load_dwordx16 s[4:19], s[0:1], 0")
    A("s_load_dwordx2 s[20:21], s[0:1], 80")
    A("v_lshrrev_b32 v1, 6, v0")
    A("v_and_b32 v2, 63, v0")
    A("v_readfirstlane_b32 s3, v1")
    if "binlast" in X:
        A("s_cmp_ge_u32 s2, 256")
        A("s_cbranch_scc1 " + L("bin"))
        A("s_mov_b32 s49, s2")
    else:
        A("s_cmp_lt_u32 s2, 128")
        A("s_cbranch_scc1 " + L("bin"))
        A("s_sub_u32 s49, s2, 128")

    RAW, FR, ACC, AF = 64, 128, 144, 8
    A("s_lshr_b32 s22, s49, 3")
    A("s_and_b32 s22, s22, 1")
    A("s_lshr_b32 s23, s49, 4")
    A("s_lshl_b32 s23, s23, 3")
    A("s_and_b32 s24, s49, 7")
    A("s_add_u32 s23, s23, s24")
    A("v_and_b32 v3, 15, v2")
    A("v_lshrrev_b32 v4, 4, v2")
    A("v_lshlrev_b32 v5, 2, v3")
    A("v_lshl_add_u32 v5, v4, 12, v5")
    A("s_mov_b32 s40, 0x05040100")
    A("s_mov_b32 s41, 0x07060302")
    A("s_cmp_ge_u32 s23, 125")
    A("s_cbranch_scc1 " + L("rep"))
    A("s_lshl_b32 s25, s22, 8")
    A("s_lshl_b32 s26, s3, 6")
    A("s_add_u32 s25, s25, s26")
    A("s_mul_i32 s26, s23, %d" % (80 * 512))
    A("v_lshlrev_b32 v6, 4, v0")
    A("s_waitcnt lgkmcnt(0)")
    stamp()
    srd(A, 28, 4, 5, 80 * 512, "s26")
    A("s_add_u32 s27, s25, %d" % (256 * 512))
    srd(A, 32, 14, 15, 130624, "s27")
    A("s_mov_b32 s42, 0")
    for i in range(10):
        A("buffer_load_dwordx4 %s, v6, s[28:31], s42 offen%s" % (v(AF + 4 * i, 4), NTH))
        if i < 9:
            A("s_add_u32 s42, s42, 4096")
    A("s_mul_i32 s27, s23, 480")
    srd(A, 36, 6, 7, 480, "s27")
    A("v_mul_u32_u24 v7, 6, v0")
    A("s_cmp_eq_u32 s22, 0")
    A("s_cbranch_scc0 " + L("nopos"))
    A("buffer_load_ushort v48, v7, s[36:39], 0 offen")
    A("buffer_load_ushort v49, v7, s[36:39], 0 offen offset:2")
    A("buffer_load_ushort v50, v7, s[36:39], 0 offen offset:4")
    A.label(L("nopos"))
    KA = 4
    def wraw(k0, k1):
        for ks in range(k0, k1):
            for i in range(8):
                A("buffer_load_dword v%d, v5, s[32:35], 0 offen offset:%d%s" % (RAW + 8 * ks + i, 512 * i, NTW))
            if ks < 7:
                A("v_add_u32 v5, 16384, v5")
    wraw(0, KA)
    A("v_lshrrev_b32 v6, 5, v0")
    A("v_mul_u32_u24 v6, %d, v6" % RS)
    A("v_and_b32 v7, 31, v0")
    A("v_lshl_add_u32 v6, v7, 4, v6")
    for i in range(10):
        if i % 2 == 0:
            A("s_waitcnt vmcnt(%d)" % (8 * KA + 8 - i))
        A("ds_write_b128 v6, %s offset:%d" % (v(AF + 4 * i, 4), 8 * RS * i))
    stamp()
    wraw(KA, 8)
    A("s_waitcnt vmcnt(63)")
    A("s_cmp_eq_u32 s22, 0")
    A("s_cbranch_scc0 " + L("nopos2"))
    A("s_mul_i32 s27, s23, 640")
    A("s_add_u32 s27, s27, %d" % WS_POS)
    srd(A, 36, 20, 21, 640, "s27")
    A("v_lshlrev_b32 v7, 3, v0")
    A("v_lshl_or_b32 v48, v49, 16, v48")
    A("v_mov_b32 v49, v50")
    A("buffer_store_dwordx2 v[48:49], v7, s[36:39], 0 offen")
    A.label(L("nopos2"))
    A("v_mul_u32_u24 v6, %d, v3" % RS)
    A("v_lshl_add_u32 v6, v4, 4, v6")
    A("s_add_u32 s27, s26, s25")
    A("s_add_u32 s27, s27, %d" % WS_B)
    srd(A, 28, 20, 21, 40512, "s27")
    A("s_mov_b32 s44, 0x%x" % NEG_LOG2E)
    A("s_mov_b32 s45, 0x%x" % NEG_LOG2E)
    A("v_lshlrev_b32 v7, 2, v3")
    A("v_lshl_add_u32 v7, v4, 11, v7")
    A("s_waitcnt lgkmcnt(0)")
    A("s_barrier")
    stamp()
    def aread(ks):
        for mt in range(5):
            A("ds_read_b128 %s, v6 offset:%d" % (v(AF + 20 * (ks & 1) + 4 * mt, 4), mt * 16 * RS + ks * 64))
    def perms(ks):
        f = FR + 8 * (ks & 1)
        for i in range(4):
            x = RAW + 8 * ks + 2 * i
            A("v_perm_b32 v%d, v%d, v%d, s40" % (f + i, x + 1, x))
        for i in range(4):
            x = RAW + 8 * ks + 2 * i
            A("v_perm_b32 v%d, v%d, v%d, s41" % (f + 4 + i, x + 1, x))
    aread(0)
    A("s_waitcnt vmcnt(56)")
    perms(0)
    for ks in range(8):
        if ks < 7:
            aread(ks + 1)
            A("s_waitcnt lgkmcnt(5)")
        else:
            A("s_waitcnt lgkmcnt(0)")
        f = FR + 8 * (ks & 1)
        for mt in range(5):
            for t in range(2):
                c = ACC + 8 * mt + 4 * t
                A("v_mfma_f32_16x16x32_bf16 %s, %s, %s, %s" % (v(c, 4), v(AF + 20 * (ks & 1) + 4 * mt, 4), v(f + 4 * t, 4), "0" if ks == 0 else v(c, 4)))
            if mt == 2 and ks < 7:
                A("s_waitcnt vmcnt(%d)" % (48 - 8 * ks))
                perms(ks + 1)
    A.nop(4)
    stamp()
    A("s_mov_b32 s42, 0")
    for mt in range(5):
        c = ACC + 8 * mt
        if mt == 4:
            A.nop(2)
        for k in range(4):
            A("v_pk_mul_f32 %s, %s, s[44:45]" % (v(c + 2 * k, 2), v(c + 2 * k, 2)))
        for r in range(4):
            A("v_cvt_pk_bf16_f32 v%d, v%d, v%d" % (c + r, c + r, c + 4 + r))
        for r in range(4):
            A("buffer_store_dword v%d, v7, s[28:31], 0 offen offset:%d" % (c + r, 512 * r))
        if mt < 4:
            A("v_add_u32 v7, 8192, v7")
    stamp()
    stamp_out()
    A("s_endpgm")

    A.label(L("rep"))
    A("s_sub_u32 s23, s23, 125")
    A("s_lshl_b32 s23, s23, 1")
    A("s_add_u32 s23, s23, s22")
    A("s_lshl_b32 s23, s23, 2")
    A("s_add_u32 s23, s23, s3")
    A("s_lshr_b32 s24, s23, 3")
    A("s_and_b32 s25, s23, 7")
    A("s_lshl_b32 s25, s25, 6")
    A("s_waitcnt lgkmcnt(0)")
    A("s_cmp_eq_u32 s24, 0")
    A("s_cselect_b32 s26, s14, s18")
    A("s_cselect_b32 s27, s15, s19")
    A("s_cmp_eq_u32 s24, 2")
    A("s_cselect_b32 s24, 131072, 0")
    A("s_add_u32 s25, s25, s24")
    srd(A, 32, 26, 27, 130624, "s25")
    A("s_mov_b32 s42, 0")
    for ks in range(8):
        for i in range(8):
            A("buffer_load_dword v%d, v5, s[32:35], 0 offen offset:%d" % (RAW + 8 * ks + i, 512 * i))
        if ks < 7:
            A("v_add_u32 v5, 16384, v5")
    srd(A, 36, 20, 21, 128, WS_B - 128)
    A("v_mov_b32 v7, 0")
    A("v_lshlrev_b32 v6, 2, v2")
    A("buffer_store_dword v7, v6, s[36:39], 0 offen")
    A("s_lshl_b32 s27, s23, 14")
    A("s_add_u32 s27, s27, %d" % WS_WP)
    srd(A, 28, 20, 21, 16384, "s27")
    A("v_lshlrev_b32 v6, 4, v2")
    A("s_mov_b32 s42, 0")
    A("s_waitcnt vmcnt(0)")
    for ks in range(8):
        f = 8 + 8 * ks if ks < 7 else FR
        for i in range(4):
            x = RAW + 8 * ks + 2 * i
            A("v_perm_b32 v%d, v%d, v%d, s40" % (f + i, x + 1, x))
            A("v_perm_b32 v%d, v%d, v%d, s41" % (f + 4 + i, x + 1, x))
        A("buffer_store_dwordx4 %s, v6, s[28:31], s42 offen" % v(f, 4))
        A("buffer_store_dwordx4 %s, v6, s[28:31], s42 offen offset:1024" % v(f + 4, 4))
        if ks < 7:
            A("s_add_u32 s42, s42, 2048")
    stamp_out()
    A("s_endpgm")

    HIST, STARTS, STAGE = 0, 1024, 5120
    DST, SRC, EA, RK, BA = 8, 16, 24, 32, 40
    A.label(L("bin"))
    A("s_sub_u32 s22, s2, %d" % (256 if "binlast" in X else 0))
    A("v_lshlrev_b32 v3, 2, v0")
    A("v_lshlrev_b32 v4, 1, v0")
    A("v_mov_b32 v5, 0")
    A("ds_write_b32 v3, v5 offset:%d" % HIST)
    A("s_mul_i32 s23, s22, %d" % (CH * 4))
    A("s_mul_i32 s24, s22, %d" % (CH * 2))
    A("s_mov_b32 s42, 4096")
    A("s_waitcnt lgkmcnt(0)")
    stamp(1)
    srd(A, 28, 12, 13, CH * 4, "s23")
    srd(A, 32, 10, 11, CH * 4, "s23")
    srd(A, 36, 8, 9, CH * 2, "s24")
    R0 = lambda i: 48 + 2 * i
    for i in range(5):
        so, im = ("0", 1024 * i) if i < 4 else ("s42", 0)
        A("buffer_load_dword v%d, v3, s[28:31], %s offen offset:%d%s" % (DST + i, so, im, NTE))
    for i in range(5):
        so, im = ("0", 1024 * i) if i < 4 else ("s42", 0)
        A("buffer_load_dword v%d, v3, s[32:35], %s offen offset:%d%s" % (SRC + i, so, im, NTE))
    for i in range(5):
        A("buffer_load_ushort v%d, v4, s[36:39], 0 offen offset:%d%s" % (EA + i, 512 * i, NTE))
    A("s_barrier")
    A("s_mov_b32 s43, 214749")
    A("s_mov_b32 s44, 625")
    A("v_mov_b32 v6, 1")
    A("s_mov_b32 s48, %d" % (CH - 1024))
    A("v_cmp_gt_u32 s[46:47], s48, v0")
    A("s_waitcnt vmcnt(10)")
    stamp()
    for i in range(5):
        A("v_mul_u32_u24 v%d, s43, v%d" % (BA + i, DST + i))
        A("v_lshrrev_b32 v%d, 23, v%d" % (BA + i, BA + i))
        A("v_mad_u32_u24 v7, v%d, s44, 15" % (BA + i))
        A("v_lshlrev_b32 v%d, 2, v%d" % (BA + i, BA + i))
        if i == 4:
            A("s_mov_b64 exec, s[46:47]")
        A("ds_add_rtn_u32 v%d, v%d, v6 offset:%d" % (RK + i, BA + i, HIST))
        A("v_lshrrev_b32 v7, 4, v7")
        A("v_sub_u32 v%d, v%d, v7" % (DST + i, DST + i))
    A("s_mov_b64 exec, -1")
    A("s_waitcnt vmcnt(0)")
    for i in range(5):
        A("v_lshlrev_b32 v%d, 9, v%d" % (R0(i), SRC + i))
        A("v_lshl_or_b32 v%d, v%d, 16, v%d" % (R0(i) + 1, DST + i, EA + i))
    A("v_lshlrev_b32 v7, 4, v2")
    A("s_waitcnt lgkmcnt(0)")
    A("s_barrier")
    stamp()
    A("ds_read_b128 v[60:63], v7 offset:%d" % HIST)
    A("s_lshl_b32 s25, s3, 10")
    A("s_add_u32 s25, s25, %d" % STARTS)
    A("s_mul_i32 s26, s22, 1024")
    A("s_add_u32 s26, s26, %d" % WS_OFF)
    srd(A, 28, 20, 21, 1024, "s26")
    A("s_mul_i32 s26, s22, %d" % CHS)
    A("s_add_u32 s26, s26, %d" % WS_REC)
    srd(A, 32, 20, 21, CH * 8, "s26")
    A("s_waitcnt lgkmcnt(0)")
    A("v_add_u32 v65, v60, v61")
    A("v_add_u32 v66, v65, v62")
    A("v_add_u32 v67, v66, v63")
    A("v_mov_b32 v68, v67")
    wave_scan(A, 68)
    A("v_sub_u32 v68, v68, v67")
    A("v_add_u32 v69, v68, v60")
    A("v_add_u32 v70, v68, v65")
    A("v_add_u32 v71, v68, v66")
    for i in range(4):
        A("v_lshl_or_b32 v%d, v%d, 16, v%d" % (72 + i, 60 + i, 68 + i))
    A("v_add_u32 v64, s25, v7")
    A("ds_write_b128 v64, v[68:71]")
    A("s_cmp_eq_u32 s3, 0")
    A("s_cbranch_scc0 " + L("nooff"))
    A("buffer_store_dwordx4 v[72:75], v7, s[28:31], 0 offen")
    A.label(L("nooff"))
    for i in range(5):
        A("v_add_u32 v%d, s25, v%d" % (BA + i, BA + i))
    A("s_waitcnt lgkmcnt(0)")
    for i in range(5):
        A("ds_read_b32 v%d, v%d" % (BA + i, BA + i))
    for i in range(5):
        A("s_waitcnt lgkmcnt(%d)" % (4 - i))
        A("v_add_lshl_u32 v%d, v%d, v%d, 3" % (BA + i, BA + i, RK + i))
    for i in range(5):
        if i == 4:
            A("s_mov_b64 exec, s[46:47]")
        A("ds_write_b64 v%d, %s offset:%d" % (BA + i, v(R0(i), 2), STAGE))
    A("s_mov_b64 exec, -1")
    A("v_lshlrev_b32 v7, 4, v0")
    A("s_mov_b32 s43, 8192")
    A("s_waitcnt lgkmcnt(0)")
    A("s_barrier")
    stamp()
    for i in range(3):
        A("ds_read_b128 %s, v7 offset:%d" % (v(8 + 4 * i, 4), STAGE + 4096 * i))
    for i in range(3):
        A("s_waitcnt lgkmcnt(%d)" % (2 - i))
        A("buffer_store_dwordx4 %s, v7, s[32:35], %s offen" % (v(8 + 4 * i, 4), ("0", "s42", "s43")[i]))
    stamp()
    stamp_out()
    A.label(L("end"))
    A("s_endpgm")
    return dict(vgpr=185 if stamps else 184, sgpr=58, agpr=0)
```

```python
from asmlib import *
from common import *

K2_GRID = 256
CAP = 192
GAP = 5
WB = (4, 3, 3, 6)
KS0 = 3
import os
HT, HTD = int(os.environ.get('HT', 10)), int(os.environ.get('HTD', 0))
G0 = 2
LUT, POSD, WX, COMP = 0, 256, 576, 1088
TCAP = 50
CAPW = 160
X2B = 8960
LUTA = X2B + (TCAP + 2) * 256
SRCT = LUTA + (TCAP + 2) * 128
ZB = SRCT + (TCAP + 2 * GAP) * 64
ZA0 = SRCT
CNT = ZB + TCAP * 1024
FLAG = CNT + 32
POSACC = CNT + 64
MB = POSACC + 640
HB = MB + 40 * RS
AB = HB + 40 * RS
K2_LDS = AB + 5 * 4096
ZA_END = CNT
assert X2B % 256 == 0 and LUTA % 128 == 0 and SRCT % 64 == 0 and 5 * CAPW <= 16 * TCAP
assert K2_LDS <= 163840 and all(x % 16 == 0 for x in (SRCT, LUTA, X2B, ZB, CNT, POSACC, MB, HB, AB)), K2_LDS

vZ, vX2, vLut, vIdx, vL, vY1, vM, vPos, vWx, vZero, vA = 1, 2, 3, 4, 5, 6, 7, 8, 9, 10, 12
T0 = 13
Dv = (16, 32)
Ev, Pv, IDX, ACC0, ACC1, Gv = 48, 64, 72, 80, 96, 112
I4, D3, Y1, X1, Zv, X2, Y2, HH = 144, 148, 152, 156, 160, 164, 166, 168
NV = 192
sH, sWE, sWX, sOUT, sWS = 4, 14, 16, 20, 22
SG, ST, SREC, SWP, SPP = 24, 28, 32, 36, 40
sBIN, sSTART, sNB_, sW, sQ, sSET, sQO = 44, 45, 46, 47, 48, 49, 50
sC = 6
sP = 56
sT1, sTE, sNB, sG, sHH, sTB, sRMW = 61, 62, 63, 64, 65, 66, 67
sM = 68
sRET, sK = 74, 76
sA, sB_, sD = 78, 79, 80
sSLOW, sWIN, sNWIN, sBASE = 81, 82, 83, 84
sCF = 85
sC0M = 90
sR0 = 92
sRET2, sFL, sEV, sTH, sWT = 96, 98, 99, 100, 101
sWO, sWE2, sWS3 = 11, 54, 51
sPM = 16

def gen_k2(A, name, stamps=False, X=()):
    L = lambda x: name + "_" + x
    st_n = [0]
    NTH = " nt" if "nth2" in X else ""
    NTO = " nt" if "nto" in X else ""
    def stamp(rt=None):
        if not stamps:
            return
        if rt is not None:
            A("s_memrealtime s[52:53]")
            A("s_waitcnt lgkmcnt(0)")
            A("v_writelane_b32 v15, s52, %d" % rt)
        A("s_memtime s[52:53]")
        A("s_waitcnt lgkmcnt(0)")
        A("v_writelane_b32 v15, s52, %d" % st_n[0])
        st_n[0] += 1
    M16 = lambda d, x, y, c: A("v_mfma_f32_32x32x16_bf16 %s, %s, %s, %s" % (v(d, 16), v(x, 4), v(y, 4), c if c == "0" else v(c, 16)))
    M4 = lambda d, g, i: A("v_mfma_f32_4x4x4bf16_1k %s, %s, %s, %s" % (v(d + 4 * i, 4), v(I4, 2), v(g + 2 * i, 2), v(d + 4 * i, 4)))
    M8Z = lambda d, x, y: A("v_mfma_f32_32x32x8bf16_1k %s, %s, %s, 0" % (v(d, 16), v(x, 2), v(y, 2)))
    def wload(mat, lo, hi):
        for f in range(lo, hi):
            if f % 4 == 0 or f == lo:
                A("s_mov_b32 s3, %d" % (mat * 131072 + (f // 4) * 4096))
            A("buffer_load_dwordx4 %s, v%d, s[%d:%d], s3 offen offset:%d" % (a(4 * f, 4), T0, SWP, SWP + 3, (f % 4) * 1024))
    def gemm(base, acc, bufs, first_zero, wait_w=None, ad=14, k0=0, k1=8):
        seq = [(ks, mt) for ks in range(k0, k1) for mt in range(3)]
        nb = len(bufs)
        A("v_add_u32 v%d, %d, v%d" % (ad, base, vA))
        def rd(i):
            ks, mt = seq[i]
            A("ds_read_b128 %s, v%d offset:%d" % (v(bufs[i % nb], 4), ad, mt * 16 * RS + ks * 64))
        for i in range(nb):
            rd(i)
        for i, (ks, mt) in enumerate(seq):
            if wait_w and mt == 0:
                wait_w(ks)
            A("s_waitcnt lgkmcnt(%d)" % min(nb - 1, len(seq) - 1 - i))
            for t in range(2):
                c = acc + 8 * mt + 4 * t
                A("v_mfma_f32_16x16x32_bf16 %s, %s, %s, %s" % (v(c, 4), v(bufs[i % nb], 4), a(8 * ks + 4 * t, 4), "0" if (first_zero and ks == 0) else v(c, 4)))
            if i + nb < len(seq):
                rd(i + nb)

    A.label(name)
    if stamps:
        A("s_memrealtime s[54:55]")
    A("s_cmp_ge_u32 s2, %d" % K2_GRID)
    A("s_cbranch_scc1 " + L("end"))
    A("s_load_dwordx2 s[22:23], s[0:1], 80")
    A("s_load_dwordx2 s[4:5], s[0:1], 0")
    A("s_load_dwordx4 s[12:15], s[0:1], 32")
    A("s_load_dwordx2 s[16:17], s[0:1], 48")
    A("s_load_dwordx2 s[20:21], s[0:1], 64")
    A("s_and_b32 s3, s2, 7")
    A("s_lshl_b32 s3, s3, 5")
    A("s_lshr_b32 s%d, s2, 3" % sBIN)
    A("s_add_u32 s%d, s%d, s3" % (sBIN, sBIN))
    A("v_lshrrev_b32 v13, 6, v0")
    A("v_and_b32 v14, 63, v0")
    A("v_readfirstlane_b32 s%d, v13" % sW)
    A("v_lshrrev_b32 v16, 2, v0")
    A("s_lshl_b32 s3, s%d, 2" % sBIN)
    A("v_lshl_add_u32 v17, v16, 10, s3")
    A("s_mul_i32 s3, s%d, 625" % sBIN)
    A("s_add_u32 s%d, s3, 15" % sSTART)
    A("s_lshr_b32 s%d, s%d, 4" % (sSTART, sSTART))
    A("s_add_u32 s3, s3, 640")
    A("s_lshr_b32 s3, s3, 4")
    A("s_sub_u32 s%d, s3, s%d" % (sNB_, sSTART))
    A("s_and_b32 s%d, s%d, 3" % (sQ, sW))
    A("s_lshr_b32 s%d, s%d, 2" % (sSET, sW))
    A("s_lshl_b32 s%d, s%d, 7" % (sQO, sQ))
    A("v_lshlrev_b32 v19, 4, v0")
    A("v_lshlrev_b32 v%d, 4, v14" % T0)
    for i in range(4):
        A("v_mov_b32 v%d, 0" % (24 + i))
    A("v_add_u32 v29, %d, v19" % ZA0)
    nz = -(-(MB - ZA0) // 8192)
    assert nz <= 8 and (CNT - ZA0) // 8192 == nz - 1
    def zfill(i):
        A("ds_write_b128 v29, v[24:27] offset:%d" % (8192 * i))
    zfill(nz - 1)
    A("s_waitcnt lgkmcnt(0)")
    if stamps:
        A("s_memrealtime s[12:13]")
        A("v_writelane_b32 v15, s54, 22")
    stamp()
    srd(A, ST, sWS, sWS + 1, 131072, WS_OFF)
    A("buffer_load_dword v18, v17, s[%d:%d], 0 offen" % (ST, ST + 3))
    A("s_lshl_b32 s3, s%d, 14" % sW)
    A("s_add_u32 s3, s3, %d" % WS_WP)
    srd(A, SWP, sWS, sWS + 1, 2 * 131072 + 16384, "s3")
    A("s_barrier")
    w0 = WB[0]
    wload(0, 0, w0)
    NZ0 = 3
    for i in range(NZ0):
        zfill(i)
    srd(A, SREC, sWS, sWS + 1, NCH * CHS, WS_REC)
    A("s_lshl_b32 s3, s%d, 9" % sSTART)
    A("s_lshl_b32 s%d, s%d, 9" % (sA, sNB_))
    srd(A, ST, sH, sH + 1, "s%d" % sA, "s3")
    A("v_mul_u32_u24 v16, %d, v16" % CHS)
    A("v_and_b32 v17, 3, v0")
    A("s_mov_b32 s%d, 8192" % sA)
    A("s_mov_b32 s%d, 16384" % sB_)
    A("s_waitcnt vmcnt(%d)" % w0)
    stamp()
    A("v_and_b32 v34, 0xffff, v18")
    A("v_lshrrev_b32 v35, 16, v18")
    A("v_add_u32 v34, v34, v17")
    A("v_lshl_add_u32 v16, v34, 3, v16")
    RR = (36, 38, 40)
    HS = Gv
    for k in range(3):
        A("buffer_load_dwordx2 %s, v16, s[%d:%d], 0 offen offset:%d" % (v(RR[k], 2), SREC, SREC + 3, 32 * k))
    A("s_barrier")
    stamp()
    A("buffer_load_dwordx4 %s, v19, s[%d:%d], 0 offen%s" % (v(HS, 4), ST, ST + 3, NTH))
    A("buffer_load_dwordx4 %s, v19, s[%d:%d], s%d offen%s" % (v(HS + 4, 4), ST, ST + 3, sA, NTH))
    A("buffer_load_dwordx4 %s, v19, s[%d:%d], s%d offen%s" % (v(HS + 8, 4), ST, ST + 3, sB_, NTH))
    srd(A, SPP, sWS, sWS + 1, 80000, WS_POS)
    A("s_lshl_b32 s3, s%d, 3" % sSTART)
    A("v_lshlrev_b32 v20, 3, v0")
    A("v_add_u32 v21, s3, v20")
    A("s_cmp_eq_u32 s%d, 0" % sW)
    A("s_cselect_b32 s%d, 80000, 0" % (SPP + 2))
    A("buffer_load_dwordx2 v[124:125], v21, s[%d:%d], 0 offen" % (SPP, SPP + 3))
    A("s_cselect_b32 s%d, 512, 0" % sA)
    A("s_mov_b32 s%d, 80000" % (SPP + 2))
    srd(A, ST, sWX, sWX + 1, "s%d" % sA)
    A("buffer_load_dwordx2 v[126:127], v20, s[%d:%d], 0 offen" % (ST, ST + 3))
    A("s_add_u32 s3, s%d, %d" % (sQO, 512 * 512))
    srd(A, ST, sWE, sWE + 1, 640, "s3")
    A("v_and_b32 v22, 31, v0")
    A("v_lshlrev_b32 v22, 2, v22")
    A("buffer_load_dword v128, v22, s[%d:%d], 0 offen" % (ST, ST + 3))
    A("buffer_load_dword v129, v22, s[%d:%d], 0 offen offset:512" % (ST, ST + 3))
    w1 = w0 + WB[1]
    wload(0, w0, w1)
    for i in range(NZ0, nz - 1):
        zfill(i)
    A("v_cmp_eq_u32 s[%d:%d], 0, v17" % (sC0M, sC0M + 1))
    A("s_mov_b32 s%d, 0" % sSLOW)
    A("s_mov_b32 s%d, 0" % sWIN)
    A("s_mov_b32 s%d, 0" % sHH)
    A("s_mov_b32 s%d, 0" % (sP - 1))
    A("s_mov_b32 s%d, %d" % (sD, CAP))
    for k in range(3):
        A("v_add_u32 v34, %d, v17" % (4 * k))
        A("v_cmp_lt_u32 s[%d:%d], v34, v35" % (sM + 2 * k, sM + 2 * k + 1))

    def rank_sink(rr, masks, sink):
        for k, r in enumerate(rr):
            A("v_lshrrev_b32 v%d, 19, v%d" % (42 + k, r + 1))
            A("v_lshl_add_u32 v%d, v%d, 2, v33" % (45 + k, 42 + k))
        for k, r in enumerate(rr):
            A("s_mov_b64 exec, s[%d:%d]" % (masks[k], masks[k] + 1))
            A("ds_add_rtn_u32 v%d, v%d, v34" % (45 + k, 45 + k))
        A("s_mov_b64 exec, -1")
        A("s_waitcnt lgkmcnt(0)")
        for k, r in enumerate(rr):
            sink(k, r, 42 + k, 45 + k, masks[k])
        A("s_mov_b64 exec, -1")

    def sink_fast(k, r, g, rk, m):
        A("v_cmp_gt_u32 vcc, s%d, v%d" % (sD, rk))
        A("v_mad_u32_u24 v%d, v%d, s%d, v%d" % (g, g, sD, rk))
        A("v_lshlrev_b32 v%d, 3, v%d" % (g, g))
        A("s_and_b64 exec, vcc, s[%d:%d]" % (m, m + 1))
        A("ds_write_b64 v%d, %s offset:%d" % (g, v(r, 2), COMP))
        A("s_mov_b64 exec, -1")

    def enum_tail(tag, sink, first):
        A("v_add_u32 v48, %d, v17" % first)
        A("v_add_u32 v49, %d, v16" % (8 * first))
        A.label(L(tag))
        A("v_cmp_lt_u32 s[%d:%d], v48, v35" % (sM, sM + 1))
        A("s_cmp_eq_u64 s[%d:%d], 0" % (sM, sM + 1))
        A("s_cbranch_scc1 " + L(tag + "_done"))
        A("buffer_load_dwordx2 %s, v49, s[%d:%d], 0 offen" % (v(RR[0], 2), SREC, SREC + 3))
        A("v_add_u32 v48, 4, v48")
        A("v_add_u32 v49, 32, v49")
        A("s_waitcnt vmcnt(0)")
        rank_sink(RR[:1], [sM], sink)
        A("s_branch " + L(tag))
        A.label(L(tag + "_done"))

    A("v_mov_b32 v33, %d" % CNT)
    A("v_mov_b32 v34, 1")
    A("s_waitcnt vmcnt(%d)" % (7 + WB[1]))
    stamp()
    rank_sink(RR, [sM, sM + 2, sM + 4], sink_fast)
    enum_tail("more", sink_fast, 12)
    w2 = w1 + WB[2]
    A("s_waitcnt lgkmcnt(0)")
    A("s_barrier")
    stamp()
    A("ds_read_b128 v[36:39], v33")
    A("ds_read_b32 v40, v33 offset:16")
    A("v_lshrrev_b32 v30, 5, v0")
    A("v_mul_u32_u24 v30, %d, v30" % RS)
    A("v_lshl_add_u32 v30, v22, 2, v30")
    A("v_add_u32 v30, %d, v30" % HB)
    A("s_waitcnt vmcnt(%d)" % WB[1])
    A("ds_write_b128 v30, %s" % v(HS, 4))
    A("ds_write_b128 v30, %s offset:%d" % (v(HS + 4, 4), 16 * RS))
    A("s_cmp_lt_u32 s%d, 4" % sW)
    A("s_cbranch_scc0 " + L("hi4"))
    A("ds_write_b128 v30, %s offset:%d" % (v(HS + 8, 4), 32 * RS))
    A("s_cmp_eq_u32 s%d, 0" % sW)
    A("s_cbranch_scc0 " + L("hi4"))
    A("ds_write_b64 v20, v[126:127] offset:%d" % WX)
    A("s_mov_b32 exec_hi, 0xff")
    A("ds_write_b64 v20, v[124:125] offset:%d" % POSD)
    A("s_mov_b32 exec_hi, -1")
    A.label(L("hi4"))
    A("s_waitcnt lgkmcnt(2)")
    for g in range(5):
        A("v_readfirstlane_b32 s%d, v%d" % (sC + g, 36 + g))
    A.nop(1)
    A("s_max_u32 s3, s%d, s%d" % (sC, sC + 1))
    for g in range(2, 5):
        A("s_max_u32 s3, s3, s%d" % (sC + g))
    A("s_cmp_gt_u32 s3, %d" % CAP)
    A("s_cbranch_scc1 " + L("slowprep"))

    A.label(L("build"))
    PB = (36, 64)
    for ps in range(2):
        b = PB[ps]
        A("s_add_u32 s%d, s%d, %d" % (sA, sW, 8 * ps))
        A("s_lshl_b32 s3, s%d, 9" % sA)
        A("v_lshl_add_u32 v%d, v14, 3, s3" % b)
        A("ds_read_b64 %s, v%d offset:%d" % (v(b + 2, 2), b, COMP))
    for g in range(5):
        A("s_add_u32 s3, s%d, 15" % (sC + g))
        A("s_lshr_b32 s3, s3, 4")
        A("s_max_u32 s3, s3, 1")
        A("s_add_u32 s%d, s%d, s3" % (sP + g, sP + g - 1))
    A("s_cmp_gt_u32 s%d, %d" % (sP + 4, TCAP))
    A("s_cbranch_scc1 " + L("slowprep"))
    A("s_add_u32 s%d, s%d, 1" % (sTH, sP + 4))
    A("s_lshr_b32 s%d, s%d, 1" % (sTH, sTH))
    A("v_lshrrev_b32 v33, 4, v14")
    for ps in range(2):
        b = PB[ps]
        sr = sR0 + 2 * ps
        A("s_add_u32 s%d, s%d, %d" % (sA, sW, 8 * ps))
        A("s_mul_i32 s%d, s%d, 43" % (sB_, sA))
        A("s_lshr_b32 s%d, s%d, 7" % (sB_, sB_))
        A("s_min_u32 m0, s%d, 4" % sB_)
        A("s_mul_i32 s3, s%d, 3" % sB_)
        A("s_movrels_b32 s%d, s%d" % (sr, sC))
        A("s_movrels_b32 s%d, s%d" % (sr + 1, sP - 1))
        A("s_movrels_b32 s%d, s%d" % (sD, sP))
        A("s_sub_u32 s3, s%d, s3" % sA)
        A("s_lshl_b32 s3, s3, 2")
        A("s_add_u32 s%d, s%d, s3" % (sr + 1, sr + 1))
        A("s_lshl_b32 s3, s3, 4")
        if ps == 1:
            A("s_cmp_eq_u32 s%d, 5" % sB_)
            A("s_cselect_b32 s%d, 0, s%d" % (sr, sr))
            A("s_cselect_b32 s%d, 0, s%d" % (sD, sD))
        A("v_add_u32 v%d, s3, v14" % b)
        A("v_cmp_gt_u32 s[%d:%d], s%d, v%d" % (sM + 2 * ps, sM + 2 * ps + 1, sr, b))
        A("v_add_u32 v%d, s%d, v33" % (b + 1, sr + 1))
        A("v_cmp_gt_u32 s[%d:%d], s%d, v%d" % (sPM + 2 * ps, sPM + 2 * ps + 1, sD, b + 1))
        A("s_waitcnt lgkmcnt(%d)" % (1 - ps))
        A("v_cndmask_b32 v%d, 0, v%d, s[%d:%d]" % (b + 2, b + 2, sM + 2 * ps, sM + 2 * ps + 1))
        A("v_cndmask_b32 v%d, 0, v%d, s[%d:%d]" % (b + 3, b + 3, sM + 2 * ps, sM + 2 * ps + 1))
        A("v_lshrrev_b32 v%d, 6, v%d" % (b, b + 2))
        A("buffer_load_dwordx2 %s, v%d, s[%d:%d], 0 offen" % (v(b + 4, 2), b, SPP, SPP + 3))
    A("v_bfe_u32 v30, v14, 3, 1")
    A("v_lshlrev_b32 v31, 7, v30")
    A("v_sub_u32 v31, 128, v31")
    A("s_mov_b32 s%d, %d" % (sD, GAP * 64))
    for ps in range(2):
        b = PB[ps]
        sr = sR0 + 2 * ps
        A("v_cmp_le_u32 s[%d:%d], s%d, v%d" % (sM + 4, sM + 5, sTH, b + 1))
        A("s_lshl_b32 s3, s%d, 6" % (sr + 1))
        A("s_add_u32 s3, s3, %d" % SRCT)
        A("v_lshl_add_u32 v%d, v14, 2, s3" % b)
        A("v_add_u32 v%d, s%d, v%d" % (b + 1, sD, b))
        A("v_cndmask_b32 v%d, v%d, v%d, s[%d:%d]" % (b, b, b + 1, sM + 4, sM + 5))
        if "tinysrc" in X:
            A("v_and_b32 v%d, 0x1e00, v%d" % (b + 2, b + 2))
        A("v_add_u32 v%d, v31, v%d" % (b + 2, b + 2))
        A("s_mov_b64 exec, s[%d:%d]" % (sM + 2 * ps, sM + 2 * ps + 1))
        A("ds_write_b32 v%d, v%d" % (b, b + 2))
        A("s_mov_b64 exec, -1")
    A("s_cmp_eq_u32 s%d, 0" % sSET)
    A("s_cselect_b32 s%d, 0, s%d" % (sTB, sTH))
    A("s_cselect_b32 s%d, s%d, s%d" % (sTE, sTH, sP + 4))
    A("s_cselect_b32 s%d, 0, %d" % (sA, GAP))
    A("s_mov_b32 s%d, 0" % sG)
    for g in range(4):
        A("s_cmp_le_u32 s%d, s%d" % (sP, sTB))
        for j in range(4 - g):
            A("s_cselect_b32 s%d, s%d, s%d" % (sP + j, sP + j + 1, sP + j))
        A("s_addc_u32 s%d, s%d, 0" % (sG, sG))
    A("s_min_u32 s%d, s%d, s%d" % (sNB, sP, sTE))
    A("s_mov_b32 s%d, s%d" % (sT1, sTB))
    A("s_mov_b32 s%d, s%d" % (sFL, sSET))
    if "evtime" in X:
        A("s_mov_b32 s16, 0")
        A("s_mov_b32 s17, 0")
    A("s_add_u32 s3, s%d, s%d" % (sTB, sA))
    A("s_lshl_b32 s3, s3, 6")
    A("s_add_u32 s3, s3, %d" % SRCT)
    A("v_lshrrev_b32 v%d, 5, v14" % vIdx)
    A("v_lshl_add_u32 v%d, v%d, 5, s3" % (vIdx, vIdx))
    A("s_waitcnt lgkmcnt(0)")
    A("s_barrier")
    stamp()
    def gathers(buf, idx, lo=0, hi=8):
        for i in range(lo, hi):
            A("buffer_load_dword v%d, v%d, s[%d:%d], 0 offen" % (Gv + 8 * buf + i, idx + i, SG, SG + 3))
    for ps in range(2):
        b = PB[ps]
        A("v_lshrrev_b32 v%d, 13, v%d" % (b + 1, b + 3))
        A("v_and_b32 v%d, 0x1f8, v%d" % (b + 1, b + 1))
        A("ds_read_b64 %s, v%d offset:%d" % (v(b + 6, 2), b + 1, POSD))
    A("s_cmp_eq_u32 s%d, 2" % sSLOW)
    A("s_cbranch_scc1 " + L("noA0"))
    wload(0, w1, w2)
    A("v_lshrrev_b32 v26, 2, v14")
    A("v_add_u32 v26, -1, v26")
    A("v_lshrrev_b32 v27, 1, v26")
    A("v_cmp_eq_u32 s[%d:%d], v27, v17" % (sA, sA + 1))
    A("v_and_b32 v26, 1, v26")
    A("v_lshlrev_b32 v26, 4, v26")
    A("v_mov_b32 v28, 0x3f80")
    A("v_lshlrev_b32 v26, v26, v28")
    A("v_cndmask_b32 v26, 0, v26, s[%d:%d]" % (sA, sA + 1))
    A("v_lshlrev_b32 v27, 2, v14")
    A("ds_write_b32 v27, v26 offset:%d" % LUT)
    A("v_cmp_gt_u32 s[%d:%d], 2, v17" % (sA, sA + 1))
    A("v_and_b32 v26, 1, v14")
    A("v_lshlrev_b32 v26, 4, v26")
    A("v_lshlrev_b32 v26, v26, v28")
    A("v_cndmask_b32 v%d, 0, v26, s[%d:%d]" % (I4, sA, sA + 1))
    A("v_cndmask_b32 v%d, v26, 0, s[%d:%d]" % (I4 + 1, sA, sA + 1))
    A("v_mov_b32 v%d, 0" % vZero)
    A("v_mov_b32 v%d, 0" % (vZero + 1))
    A("v_lshrrev_b32 v27, 5, v14")
    A("v_bfe_u32 v26, v14, 2, 3")
    A("v_mul_u32_u24 v26, %d, v26" % RS)
    A("v_lshl_add_u32 v26, v27, 4, v26")
    A("s_add_u32 s3, s%d, %d" % (sQO, MB))
    A("v_add_u32 v%d, s3, v26" % vM)
    A("s_mul_i32 s3, s%d, 640" % sW)
    A("s_add_u32 s3, s3, %d" % COMP)
    A("v_add_u32 v%d, s3, v22" % vPos)
    A("s_add_u32 s3, s%d, %d" % (sQO, WX))
    A("v_lshl_add_u32 v%d, v27, 4, s3" % vWx)
    A("v_and_b32 v26, 15, v14")
    A("v_bfe_u32 v27, v14, 4, 1")
    A("v_cmp_eq_u32 s[%d:%d], v26, v27" % (sA, sA + 1))
    A("v_mov_b32 v27, %d" % (LUT + 144))
    A.nop(1)
    A("v_cndmask_b32 v%d, v27, v%d, s[%d:%d]" % (vWx, vWx, sA, sA + 1))
    A("v_mul_u32_u24 v26, %d, v26" % RS)
    A("v_lshl_add_u32 v%d, v33, 4, v26" % vA)
    A("s_add_u32 s3, s%d, %d" % (sQO, WS_B - 128))
    A("s_add_u32 s%d, s%d, s3" % (SG, sWS))
    A("s_addc_u32 s%d, s%d, 0" % (SG + 1, sWS + 1))
    A("s_or_b32 s%d, s%d, 0x40000" % (SG + 1, SG + 1))
    A("s_mov_b32 s%d, 64" % (SG + 2))
    A("s_mov_b32 s%d, 0x00800000" % (SG + 3))
    A("s_mov_b32 s%d, 0x%x" % (sK, NEG_LOG2E))
    A("s_mov_b32 s%d, 0x%x" % (sK + 1, NEG_LOG2E))
    A("v_cmp_gt_u32 s[%d:%d], 32, v14" % (sA, sA + 1))
    for i in range(2):
        x = 128 + i
        A("v_lshlrev_b32 v130, 16, v%d" % x)
        A("v_and_b32 v131, 0xffff0000, v%d" % x)
        A("v_pk_mul_f32 v[130:131], v[130:131], s[%d:%d]" % (sK, sK + 1))
        A("v_cvt_pk_bf16_f32 v132, v130, v131")
        A("v_lshlrev_b32 v134, 16, v132")
        A("v_and_b32 v135, 0xffff0000, v132")
        A("v_pk_add_f32 v[130:131], v[130:131], v[134:135] neg_lo:[0,1] neg_hi:[0,1]")
        A("v_cvt_pk_bf16_f32 v133, v130, v131")
        A("v_cndmask_b32 v%d, v133, v132, s[%d:%d]" % (Y2 + i, sA, sA + 1))
    A("s_waitcnt vmcnt(%d)" % (2 + w2 - w1))
    gemm(HB, HH, [ACC0 + 4 * i for i in range(8)], True, None, ad=31, k1=KS0)
    assert 2 * KS0 <= w1
    A("s_waitcnt vmcnt(%d)" % (w2 - w1))
    wload(0, w2, 16)
    A("s_branch " + L("geo"))
    A.label(L("noA0"))
    A("s_waitcnt vmcnt(0)")
    A.label(L("geo"))
    stamp()
    for k in range(4):
        A("ds_read_b128 %s, v%d offset:%d" % (v(Gv + 8 * k, 4), vIdx, 64 * k))
        A("ds_read_b128 %s, v%d offset:%d" % (v(Gv + 8 * k + 4, 4), vIdx, 64 * k + 16))
    A("v_lshlrev_b32 v32, 10, v33")
    A("v_lshl_add_u32 v32, v30, 9, v32")
    A("v_and_b32 v33, 7, v14")
    A("v_lshl_add_u32 v32, v33, 1, v32")
    A("s_mov_b32 s%d, 0x00200020" % sA)
    for ps in range(2):
        b = PB[ps]
        sr = sR0 + 2 * ps
        A("s_mov_b64 exec, s[%d:%d]" % (sPM + 2 * ps, sPM + 2 * ps + 1))
        A("s_cbranch_execz " + L("geo_done%d" % ps))
        t = b + 8
        A("v_lshlrev_b32 v%d, 16, v%d" % (t, b + 6))
        A("v_and_b32 v%d, 0xffff0000, v%d" % (t + 1, b + 6))
        A("v_lshlrev_b32 v%d, 16, v%d" % (t + 2, b + 4))
        A("v_and_b32 v%d, 0xffff0000, v%d" % (t + 3, b + 4))
        A("v_lshlrev_b32 v%d, 16, v%d" % (t + 4, b + 7))
        A("v_lshlrev_b32 v%d, 16, v%d" % (t + 5, b + 5))
        A("v_pk_add_f32 %s, %s, %s neg_lo:[0,1] neg_hi:[0,1]" % (v(t, 2), v(t, 2), v(t + 2, 2)))
        A("v_sub_f32 v%d, v%d, v%d" % (t + 4, t + 4, t + 5))
        A("v_cvt_pk_bf16_f32 v%d, v%d, v%d" % (b + 4, t, t + 1))
        A("v_cvt_pk_bf16_f32 v%d, v%d, 1.0" % (b + 5, t + 4))
        A("v_bfe_u32 v%d, v%d, 16, 3" % (t + 9, b + 3))
        A("v_lshl_add_u32 v%d, v%d, 6, v32" % (t + 9, t + 9))
        A("s_lshl_b32 s3, s%d, 10" % (sr + 1))
        A("s_add_u32 s3, s3, %d" % ZB)
        A("v_add_u32 v%d, s3, v%d" % (t + 9, t + 9))
        A("s_mov_b64 exec, s[%d:%d]" % (sM + 2 * ps, sM + 2 * ps + 1))
        A("ds_write_b16_d16_hi v%d, v%d" % (t + 9, b + 5))
        A("ds_write_b16 v%d, v%d offset:16" % (t + 9, b + 4))
        A("ds_write_b16_d16_hi v%d, v%d offset:32" % (t + 9, b + 4))
        A("ds_write_b16 v%d, v%d offset:48" % (t + 9, b + 5))
        A("s_mov_b64 exec, s[%d:%d]" % (sPM + 2 * ps, sPM + 2 * ps + 1))
        A("v_lshlrev_b32 v%d, 16, v%d" % (t, b + 4))
        A("v_and_b32 v%d, 0xffff0000, v%d" % (t + 1, b + 4))
        A("v_lshlrev_b32 v%d, 16, v%d" % (t + 2, b + 5))
        A("v_pk_mul_f32 %s, %s, %s" % (v(t, 2), v(t, 2), v(t, 2)))
        A("v_mul_f32 v%d, v%d, v%d" % (t + 2, t + 2, t + 2))
        A("v_cvt_pk_bf16_f32 v%d, v%d, v%d" % (t, t, t + 1))
        A("v_cvt_pk_bf16_f32 v%d, 0, v%d" % (t + 2, t + 2))
        A("v_lshlrev_b32 v%d, 16, v%d" % (t + 1, t))
        A("v_and_b32 v%d, 0xffff0000, v%d" % (t, t))
        A("v_add_f32 v%d, v%d, v%d" % (t, t + 1, t))
        A("v_add_f32 v%d, v%d, v%d" % (t, t, t + 2))
        A("v_cvt_pk_bf16_f32 v%d, v%d, 0" % (t, t))
        A("v_and_b32 v%d, 0xffff, v%d" % (t + 1, b + 3))
        A("v_lshlrev_b32 v%d, 16, v%d" % (t + 2, t))
        A("v_lshlrev_b32 v%d, 16, v%d" % (t + 3, b + 3))
        A("s_lshl_b32 s3, s%d, 8" % (sr + 1))
        A("s_add_u32 s3, s3, %d" % X2B)
        A("v_lshl_add_u32 v%d, v14, 4, s3" % (t + 4))
        A("ds_write_b128 v%d, %s" % (t + 4, v(t, 4)))
        A("v_bfe_u32 v%d, v%d, 16, 2" % (t + 6, b + 3))
        A("v_bfe_u32 v%d, v%d, 18, 1" % (t + 7, b + 3))
        A("v_cmp_eq_u32 vcc, 0, v%d" % (t + 7))
        A("v_mul_u32_u24 v%d, s%d, v%d" % (t + 6, sA, t + 6))
        A("v_add_u32 v%d, 0x00200010, v%d" % (t + 6, t + 6))
        A("v_cndmask_b32_e64 v%d, v%d, 0, vcc" % (t + 7, t + 6))
        A("v_cndmask_b32_e64 v%d, 0, v%d, vcc" % (t + 6, t + 6))
        A("s_lshl_b32 s3, s%d, 7" % (sr + 1))
        A("s_add_u32 s3, s3, %d" % LUTA)
        A("v_lshl_add_u32 v%d, v14, 3, s3" % (t + 8))
        A("ds_write_b64 v%d, %s" % (t + 8, v(t + 6, 2)))
        A.label(L("geo_done%d" % ps))
    A("s_mov_b64 exec, -1")
    stamp()
    A("s_lshl_b32 s3, s%d, 10" % sTB)
    A("s_add_u32 s3, s3, %d" % ZB)
    A("v_add_u32 v%d, s3, v%d" % (vZ, T0))
    A("s_lshl_b32 s3, s%d, 2" % sG)
    A("s_add_u32 s3, s3, s%d" % sQ)
    A("s_lshl_b32 s3, s3, 10")
    A("s_add_u32 s3, s3, %d" % AB)
    A("v_add_u32 v%d, s3, v%d" % (vY1, T0))
    A("v_bfe_u32 v26, v14, 1, 1")
    A("v_bfe_u32 v27, v14, 3, 2")
    A("v_lshl_add_u32 v26, v27, 1, v26")
    A("v_bfe_u32 v27, v14, 2, 1")
    A("v_lshl_add_u32 v26, v27, 3, v26")
    A("v_and_b32 v27, 1, v14")
    A("v_lshl_add_u32 v28, v26, 1, v27")
    A("s_lshl_b32 s3, s%d, 8" % sTB)
    A("s_add_u32 s3, s3, %d" % X2B)
    A("v_lshl_add_u32 v%d, v28, 3, s3" % vX2)
    A("v_lshrrev_b32 v28, 5, v14")
    A("v_lshl_add_u32 v27, v28, 1, v27")
    A("v_lshl_add_u32 v27, v26, 2, v27")
    A("s_lshl_b32 s3, s%d, 7" % sTB)
    A("s_add_u32 s3, s3, %d" % LUTA)
    A("v_lshl_add_u32 v%d, v27, 1, s3" % vLut)
    A("s_waitcnt lgkmcnt(0)")
    for k in range(G0):
        gathers(k, Gv + 8 * k)
    A("s_cmp_eq_u32 s%d, 2" % sSLOW)
    A("s_cbranch_scc1 " + L("noA"))
    def ww(ks):
        A("s_waitcnt vmcnt(%d)" % (8 * G0 + 14 - 2 * ks))
    gemm(HB, HH, [ACC0 + 4 * i for i in range(8)], True, ww, ad=31, k0=KS0)
    A("v_lshrrev_b32 v30, 5, v14")
    A("v_lshlrev_b32 v30, 12, v30")
    A("v_bfe_u32 v31, v14, 4, 1")
    A("v_lshl_add_u32 v30, v31, 9, v30")
    A("v_and_b32 v31, 15, v14")
    A("v_lshl_add_u32 v30, v31, 4, v30")
    A("s_lshr_b32 s3, s%d, 1" % sW)
    A("s_lshl_b32 s3, s3, 10")
    A("s_and_b32 s%d, s%d, 1" % (sA, sW))
    A("s_lshl_b32 s%d, s%d, 8" % (sA, sA))
    A("s_add_u32 s3, s3, s%d" % sA)
    A("s_add_u32 s3, s3, %d" % AB)
    A("v_add_u32 v30, s3, v30")
    for mt in range(3):
        c = HH + 8 * mt
        for k in range(4):
            A("v_pk_mul_f32 %s, %s, s[%d:%d]" % (v(c + 2 * k, 2), v(c + 2 * k, 2), sK, sK + 1))
        for r in range(4):
            A("v_cvt_pk_bf16_f32 v%d, v%d, v%d" % (c + r, c + r, c + 4 + r))
        if mt == 2:
            A("s_mov_b32 exec_hi, 0")
        A("ds_write_b128 v30, %s offset:%d" % (v(c, 4), 8192 * mt))
    A("s_mov_b64 exec, -1")
    A.label(L("noA"))
    for k in range(G0, 4):
        gathers(k, Gv + 8 * k)
    M8Z(ACC0, vZero, vZero)
    M8Z(ACC1, vZero, vZero)
    for i in range(2):
        A("v_pk_mov_b32 %s, %s, %s" % (v(Zv + 2 * i, 2), v(vZero, 2), v(vZero, 2)))
    for i in range(4):
        A("v_pk_mov_b32 %s, %s, %s" % (v(Pv + 2 * i, 2), v(vZero, 2), v(vZero, 2)))
    A("s_waitcnt lgkmcnt(0)")
    A("s_barrier")
    stamp(20)

    A("ds_read_u16 v%d, v%d" % (vL, vLut))
    A("ds_read_b64 %s, v%d" % (v(X2, 2), vX2))
    A("ds_read_b128 %s, v%d" % (v(Y1, 4), vY1))
    A("ds_read_b128 %s, v%d offset:256" % (v(IDX, 4), vIdx))
    A("ds_read_b128 %s, v%d offset:272" % (v(IDX + 4, 4), vIdx))
    for g in range(5):
        A("ds_write_b32 v%d, v%d offset:%d" % (vPos, vZero, 128 * g))
    A("s_waitcnt lgkmcnt(9)")
    A("ds_read_b128 %s, v%d" % (v(X1, 4), vL))
    A("ds_read_u16 v%d, v%d offset:128" % (vL, vLut))
    A("s_waitcnt lgkmcnt(10)")
    M8Z(Dv[0], X2, Y2)
    A("s_sub_u32 s3, s%d, 1" % sP)
    A("s_min_u32 s%d, s3, s%d" % (sEV, sTE))
    A.nop(7)
    A("s_waitcnt lgkmcnt(0)")
    M16(Dv[0], X1, Y1, Dv[0])
    A.nop(9)
    A("s_waitcnt vmcnt(24)")
    stamp()
    for i in range(4):
        M4(Dv[0], Gv, i)
    gathers(0, IDX)
    def ynext():
        A("s_cmp_lt_u32 s%d, 4" % sG)
        A("s_cselect_b32 s3, 4096, 0")
        A("v_add_u32 v%d, s3, v%d" % (vY1, vY1))
        A("s_mov_b32 s%d, s%d" % (sEV, sNB))
        A("ds_read_b128 %s, v%d" % (v(Y1, 4), vY1))
    A("s_cmp_eq_u32 s%d, s%d" % (sEV, sT1))
    A("s_cbranch_scc0 " + L("noy0"))
    ynext()
    A.label(L("noy0"))
    A("s_mov_b32 s%d, 131072" % sWO)
    A("s_mul_i32 s3, s%d, %d" % (sSET, HTD))
    A("s_add_u32 s3, s3, %d" % HT)
    A("s_add_u32 s%d, s%d, s3" % (sWT, sTB))
    A("s_add_u32 s3, s%d, 8" % sTB)
    A("s_cmp_eq_u32 s%d, 0" % sHH)
    A("s_cselect_b32 s%d, s3, 0" % sWE2)
    A("s_cselect_b32 s%d, s%d, 2000" % (sWT, sWT))
    A("s_min_u32 s%d, s%d, s%d" % (sEV, sEV, sWT))
    A.label(L("loop"))
    loop_start = len(A.lines)
    for k in range(8):
        Dc, Dn, gb = Dv[k & 1], Dv[(k + 1) & 1], (k + 1) & 3
        ex = ["v_exp_f32 v%d, v%d" % (Ev + i, Dc + i) for i in range(16)]
        ad = ["v_pk_add_f32 %s, %s, 1.0 op_sel_hi:[1,0]" % (v(Ev + 2 * i, 2), v(Ev + 2 * i, 2)) for i in range(8)]
        rc = ["v_rcp_f32 v%d, v%d" % (Ev + i, Ev + i) for i in range(16)]
        mu = ["v_pk_mul_f32 %s, %s, %s" % (v(Ev + 2 * i, 2), v(Ev + 2 * i, 2), v(Dc + 2 * i, 2)) for i in range(8)]
        cv = ["v_cvt_pk_bf16_f32 v%d, v%d, v%d" % (Pv + i, Ev + 4 * (i % 4) + i // 4, Ev + 4 * (i % 4) + 2 + i // 4) for i in range(8)]
        A("s_setprio %d" % (3 - k % 4))
        A("ds_read_b64 %s, v%d offset:%d" % (v(X2, 2), vX2, 256 * (k + 1)))
        A("ds_read_b128 %s, v%d" % (v(X1, 4), vL))
        A("ds_read_u16 v%d, v%d offset:%d" % (vL, vLut, 128 * (k + 2)))
        A("ds_read_b128 %s, v%d offset:%d" % (v(IDX, 4), vIdx, 64 * (k + 5)))
        A("ds_read_b128 %s, v%d offset:%d" % (v(IDX + 4, 4), vIdx, 64 * (k + 5) + 16))
        A(ex[0])
        M16(ACC0, Pv, Zv, ACC0)
        for x in ex[1:5]:
            A(x)
        M16(ACC1, Pv + 4, Zv, ACC1)
        A("ds_read_b128 %s, v%d offset:%d" % (v(Zv, 4), vZ, 1024 * k))
        for x in ex[5:9]:
            A(x)
        A("s_waitcnt lgkmcnt(5)")
        M8Z(Dn, X2, Y2)
        for x in ex[9:12]:
            A(x)
        if "now" not in X:
            A("s_add_u32 s%d, s%d, %d" % (sWS3, sWO, (k // 2) * 4096))
            A("s_cmp_lt_u32 s%d, s%d" % (sT1, sWE2))
            A("s_cselect_b64 exec, -1, 0")
            for f in (2 * k, 2 * k + 1):
                A("buffer_load_dwordx4 %s, v%d, s[%d:%d], s%d offen offset:%d" % (a(4 * f, 4), T0, SWP, SWP + 3, sWS3, (f % 4) * 1024))
            A("s_mov_b64 exec, -1")
        for x in ex[12:] + ad + rc[:1]:
            A(x)
        A("s_waitcnt lgkmcnt(1)")
        M16(Dn, X1, Y1, Dn)
        for x in rc[1:10]:
            A(x)
        A("s_waitcnt vmcnt(24)")
        for i in range(4):
            M4(Dn, Gv + 8 * gb, i)
            A(rc[10 + i])
            gathers(gb, IDX, 2 * i, 2 * i + 2)
        for x in rc[14:] + mu:
            A(x)
        if k == 7:
            A("v_add_u32 v%d, 8192, v%d" % (vZ, vZ))
            A("v_add_u32 v%d, 2048, v%d" % (vX2, vX2))
            A("v_add_u32 v%d, 1024, v%d" % (vLut, vLut))
            A("v_add_u32 v%d, 512, v%d" % (vIdx, vIdx))
        for x in cv:
            A(x)
        A("s_add_u32 s%d, s%d, 1" % (sT1, sT1))
        A("s_cmp_eq_u32 s%d, s%d" % (sT1, sEV))
        A("s_waitcnt lgkmcnt(0)")
        A("s_cbranch_scc1 " + L("ev%d" % k))
        A.label(L("next%d" % k))
        if "ittime" in X:
            A("s_memtime s[52:53]")
            A("s_sub_u32 m0, s%d, s%d" % (sT1, sTB))
            A("s_waitcnt lgkmcnt(0)")
            A("v_writelane_b32 v146, s52, m0")
    A("s_branch " + L("loop"))
    body = A.lines[loop_start:]
    if "nogather" in X: body = [l for l in body if not l.startswith("buffer_load")]
    if "nomfma" in X: body = [l for l in body if not l.startswith("v_mfma")]
    if "notrans" in X: body = [l for l in body if not l.startswith(("v_exp", "v_rcp"))]
    if "nopk" in X: body = [l for l in body if not l.startswith(("v_pk", "v_cvt"))]
    if "nos2" in X: body = [l for l in body if not (l.startswith("v_mfma") and (" %s," % v(ACC0, 16) in l[:40] or " %s," % v(ACC1, 16) in l[:40]))]
    if "nos1" in X: body = [l for l in body if not (l.startswith("v_mfma_f32_32") and not (" %s," % v(ACC0, 16) in l[:40] or " %s," % v(ACC1, 16) in l[:40]))]
    if "noprio" in X: body = [l for l in body if not l.startswith("s_setprio")]
    A.lines[loop_start:] = body
    WXR = [IDX, IDX + 4, X1, Pv]
    FA, FP, FU = 14, X2, X2 + 1
    def d3():
        for i in range(4):
            A("v_mfma_f32_16x16x32_bf16 %s, %s, %s, %s" % (v(D3, 4), v(WXR[i], 4), v(Ev + 4 * i, 4), "0" if i == 0 else v(D3, 4)))
    for k in range(8):
        A.label(L("ev%d" % k))
        A("s_call_b64 s[%d:%d], %s" % (sRET, sRET + 1, L("event")))
        A("s_cbranch_scc0 " + L("next%d" % k))
        A("s_branch " + L("send"))

    A.label(L("event"))
    A("s_setprio 3")
    A("s_cmp_eq_u32 s%d, s%d" % (sT1, sNB))
    A("s_cbranch_scc0 " + L("extra"))
    M16(ACC0, Pv, Zv, ACC0)
    M16(ACC1, Pv + 4, Zv, ACC1)
    for i in range(4):
        A("ds_read_b128 %s, v%d offset:%d" % (v(WXR[i], 4), vWx, 32 * i))
    A("s_mul_i32 s3, s%d, %d" % (sG, 8 * RS))
    A("v_add_u32 v%d, s3, v%d" % (FA, vM))
    A("s_lshl_b32 s3, s%d, 7" % sG)
    A("v_add_u32 v%d, s3, v%d" % (FP, vPos))
    A("s_sub_u32 s%d, s%d, s%d" % (sRMW, sP, sT1))
    A("s_or_b32 s%d, s%d, s%d" % (sB_, sRMW, sSLOW))
    for g in range(4):
        A("s_mov_b32 s%d, s%d" % (sP + g, sP + g + 1))
    A("s_add_u32 s%d, s%d, 1" % (sG, sG))
    A("s_min_u32 s%d, s%d, s%d" % (sNB, sP, sTE))
    A("s_sub_u32 s3, s%d, 1" % sP)
    A("s_min_u32 s%d, s3, s%d" % (sEV, sTE))
    A("s_min_u32 s%d, s%d, s%d" % (sEV, sEV, sWT))
    for r in range(16):
        A("v_cvt_pk_bf16_f32 v%d, v%d, v%d" % (Ev + r, ACC0 + r, ACC1 + r))
    A("s_cmp_eq_u32 s%d, 0" % sB_)
    A("s_waitcnt lgkmcnt(0)")
    d3()
    A("s_cbranch_scc0 " + L("rmwc"))
    A("s_mov_b64 exec, s[%d:%d]" % (sC0M, sC0M + 1))
    for i in range(4):
        A("ds_write_b128 v%d, %s offset:%d" % (FA, v(Ev + 4 * i, 4), 32 * i))
    A("s_mov_b64 exec, -1")
    A.label(L("wrote"))
    M8Z(ACC0, vZero, vZero)
    M8Z(ACC1, vZero, vZero)
    for i in range(4):
        A("v_mov_b32 v%d, 0" % (Zv + i))
    A("s_mov_b64 exec, 0xffff")
    A("ds_write2_b32 v%d, v%d, v%d offset1:16" % (FP, D3, D3 + 1))
    A("s_mov_b64 exec, -1")
    A("s_cmp_le_u32 s%d, s%d" % (sEV, sT1))
    A("s_cselect_b32 s3, 1, s%d" % sFL)
    A("s_cmp_lg_u32 s3, 0")
    A("s_cbranch_scc1 " + L("extra0"))
    A("s_setpc_b64 s[%d:%d]" % (sRET, sRET + 1))
    A.label(L("rmwc"))
    A("s_call_b64 s[%d:%d], %s" % (sRET2, sRET2 + 1, L("rmw")))
    A("s_branch " + L("wrote"))
    A.label(L("extra0"))
    A("s_cmp_eq_u32 s%d, 0" % sFL)
    A("s_cbranch_scc1 " + L("noflag"))
    A("s_sub_u32 s%d, s%d, 1" % (sFL, sFL))
    A("s_lshl_b32 s3, s%d, 2" % sQ)
    A("s_add_u32 s3, s3, %d" % FLAG)
    A("v_mov_b32 v%d, s3" % FP)
    A("s_add_u32 s3, s%d, 1" % sWIN)
    A("v_mov_b32 v%d, s3" % FU)
    A("s_waitcnt lgkmcnt(0)")
    A("ds_write_b32 v%d, v%d" % (FP, FU))
    A.label(L("noflag"))
    A("s_cmp_eq_u32 s%d, s%d" % (sT1, sTE))
    A("s_cbranch_scc0 " + L("extra"))
    A("s_setpc_b64 s[%d:%d]" % (sRET, sRET + 1))
    A.label(L("extra"))
    A("s_sub_u32 s%d, s%d, 1" % (sEV, sP))
    A("s_cmp_eq_u32 s%d, s%d" % (sEV, sT1))
    A("s_cbranch_scc0 " + L("noy"))
    ynext()
    A.label(L("noy"))
    A("s_cmp_eq_u32 s%d, s%d" % (sT1, sWT))
    A("s_cbranch_scc1 " + L("hhnow"))
    A.label(L("xret"))
    A("s_min_u32 s%d, s%d, s%d" % (sEV, sEV, sNB))
    A("s_min_u32 s%d, s%d, s%d" % (sEV, sEV, sWT))
    A("s_cmp_eq_u32 s%d, s%d" % (sT1, sTE))
    A("s_setpc_b64 s[%d:%d]" % (sRET, sRET + 1))
    A.label(L("hhnow"))
    A("s_waitcnt vmcnt(8)")
    A("s_call_b64 s[%d:%d], %s" % (sRET2, sRET2 + 1, L("hh")))
    A("s_add_u32 s%d, s%d, 8" % (sWE2, sT1))
    A("s_branch " + L("xret"))

    A.label(L("hh"))
    if "hhlo" in X:
        A("s_setprio 0")
    if "nohh" not in X:
        gemm(HB, HH, [Ev + 4 * i for i in range(4)] + [IDX, IDX + 4], True)
    A("s_add_u32 s%d, s%d, 1" % (sHH, sHH))
    A("s_mov_b32 s%d, 262144" % sWO)
    A("s_mov_b32 s%d, 2000" % sWT)
    A("s_setpc_b64 s[%d:%d]" % (sRET2, sRET2 + 1))

    A.label(L("rmw"))
    A("s_cmp_eq_u32 s%d, 0" % sRMW)
    A("s_cbranch_scc1 " + L("rmw2"))
    A("s_lshl_b32 s3, s%d, 2" % sQ)
    A("s_add_u32 s3, s3, %d" % FLAG)
    A("v_mov_b32 v%d, s3" % Zv)
    A.label(L("poll"))
    A("ds_read_b32 v%d, v%d" % (Zv + 1, Zv))
    for i in range(4):
        A("ds_read_b128 %s, v%d offset:%d" % (v(Dv[0] + 4 * i, 4), FA, 32 * i))
    A("s_waitcnt lgkmcnt(4)")
    A("v_readfirstlane_b32 s3, v%d" % (Zv + 1))
    A.nop(1)
    A("s_cmp_gt_u32 s3, s%d" % sWIN)
    A("s_cbranch_scc0 " + L("poll"))
    for i in range(4):
        A("s_waitcnt lgkmcnt(%d)" % (3 - i))
        for j in range(4):
            r = 4 * i + j
            A("v_lshlrev_b32 v%d, 16, v%d" % (Dv[1] + r, Dv[0] + r))
            A("v_and_b32 v%d, 0xffff0000, v%d" % (Dv[0] + r, Dv[0] + r))
    for i in range(8):
        A("v_pk_add_f32 %s, %s, %s" % (v(Dv[1] + 2 * i, 2), v(Dv[1] + 2 * i, 2), v(ACC0 + 2 * i, 2)))
        A("v_pk_add_f32 %s, %s, %s" % (v(Dv[0] + 2 * i, 2), v(Dv[0] + 2 * i, 2), v(ACC1 + 2 * i, 2)))
    A("s_mov_b64 exec, s[%d:%d]" % (sC0M, sC0M + 1))
    for r in range(16):
        A("v_cvt_pk_bf16_f32 v%d, v%d, v%d" % (Dv[0] + r, Dv[1] + r, Dv[0] + r))
        if r % 4 == 3:
            A("ds_write_b128 v%d, %s offset:%d" % (FA, v(Dv[0] + r - 3, 4), 32 * (r // 4)))
    A("s_mov_b64 exec, -1")
    A("s_setpc_b64 s[%d:%d]" % (sRET2, sRET2 + 1))
    A.label(L("rmw2"))
    A("s_mov_b64 exec, s[%d:%d]" % (sC0M, sC0M + 1))
    for i in range(4):
        A("ds_read_b128 %s, v%d offset:%d" % (v(Zv, 4), FA, 32 * i))
        A("s_waitcnt lgkmcnt(0)")
        for j in range(4):
            r = 4 * i + j
            A("v_lshlrev_b32 v%d, 16, v%d" % (FU, Zv + j))
            A("v_and_b32 v%d, 0xffff0000, v%d" % (Zv + j, Zv + j))
            A("v_add_f32 v%d, v%d, v%d" % (FU, ACC0 + r, FU))
            A("v_add_f32 v%d, v%d, v%d" % (Zv + j, ACC1 + r, Zv + j))
            A("v_cvt_pk_bf16_f32 v%d, v%d, v%d" % (Zv + j, FU, Zv + j))
        A("ds_write_b128 v%d, %s offset:%d" % (FA, v(Zv, 4), 32 * i))
    A("s_mov_b64 exec, -1")
    A("s_setpc_b64 s[%d:%d]" % (sRET2, sRET2 + 1))

    def possum(ad, dst, tmp):
        A("v_lshlrev_b32 v%d, 2, v0" % ad)
        for w in range(8):
            A("ds_read_b32 v%d, v%d offset:%d" % (tmp + w, ad, COMP + 640 * w))
        A("v_add_u32 v%d, %d, v%d" % (ad, POSACC, ad))
        A("ds_read_b32 v%d, v%d" % (dst, ad))
        A("s_waitcnt lgkmcnt(0)")
        for w in range(0, 8, 4):
            A("v_pk_add_f32 %s, %s, %s" % (v(tmp + w, 2), v(tmp + w, 2), v(tmp + w + 2, 2)))
        A("v_pk_add_f32 %s, %s, %s" % (v(tmp, 2), v(tmp, 2), v(tmp + 4, 2)))
        A("v_add_f32 v%d, v%d, v%d" % (dst, dst, tmp))
        A("v_add_f32 v%d, v%d, v%d" % (dst, dst, tmp + 1))

    A.label(L("send"))
    stamp()
    A("s_setprio 0")
    A("s_cmp_eq_u32 s%d, 0" % sHH)
    A("s_cbranch_scc1 " + L("late1"))
    A("s_cmp_eq_u32 s%d, 1" % sHH)
    A("s_cselect_b32 s3, s%d, 0" % sWE2)
    A("s_cmp_gt_u32 s3, s%d" % sTE)
    A("s_cbranch_scc1 " + L("late2"))
    A.label(L("wok"))
    A("s_or_b32 s%d, s%d, 2" % (sHH, sHH))
    A("s_cmp_eq_u32 s%d, 0" % sSLOW)
    A("s_cbranch_scc0 " + L("nextwin"))
    A.label(L("final"))
    if "ittime" in X:
        A("v_mov_b32 v11, v146")
    A("v_and_b32 v14, 63, v0")
    A("v_lshrrev_b32 v1, 4, v14")
    A("v_and_b32 v2, 15, v14")
    A("s_lshl_b32 s3, s%d, 6" % sW)
    A("v_lshl_add_u32 v2, v2, 2, s3")
    A("v_lshl_add_u32 v3, v1, 11, v2")
    A("v_mul_u32_u24 v1, %d, v1" % (4 * RS))
    A("v_add_u32 v1, v1, v2")
    A("v_add_u32 v1, %d, v1" % HB)
    HR = Gv
    A("s_waitcnt vmcnt(0)")
    for mt in range(3):
        for r in range(4):
            A("ds_read_b32 v%d, v1 offset:%d" % (HR + 4 * mt + r, (16 * mt + r) * RS))
    for k in range(12):
        A("v_pk_mul_f32 %s, %s, s[%d:%d]" % (v(HH + 2 * k, 2), v(HH + 2 * k, 2), sK, sK + 1))
    A("s_lshl_b32 s3, s%d, 9" % sSTART)
    A("s_lshl_b32 s%d, s%d, 9" % (sA, sNB_))
    srd(A, ST, sOUT, sOUT + 1, "s%d" % sA, "s3")
    A("s_mul_i32 s3, s%d, 6" % sSTART)
    A("s_add_u32 s3, s3, 5120000")
    srd(A, SREC, sOUT, sOUT + 1, 248, "s3")
    A("s_mov_b32 s%d, 0x%x" % (sK, NEG_LN2))
    A("s_mov_b32 s%d, 0x%x" % (sK + 1, NEG_LN2))
    A("v_add_u32 v14, %d, v%d" % (MB, vA))
    HU = 144
    A("s_waitcnt lgkmcnt(0)")
    for mt in range(3):
        for r in range(4):
            A("v_lshlrev_b32 v%d, 16, v%d" % (HU + 8 * mt + r, HR + 4 * mt + r))
            A("v_and_b32 v%d, 0xffff0000, v%d" % (HU + 8 * mt + 4 + r, HR + 4 * mt + r))
    A("s_barrier")
    stamp(21)
    FB = lambda mt, ks: 16 + 32 * mt + 4 * ks
    for mt in range(2):
        for ks in range(8):
            if mt == 1 and ks == 7:
                break
            A("ds_read_b128 %s, v14 offset:%d" % (v(FB(mt, ks), 4), mt * 16 * RS + ks * 64))
    def fm(mt, ks, t):
        c = HH + 8 * mt + 4 * t
        A("v_mfma_f32_16x16x32_bf16 %s, %s, %s, %s" % (v(c, 4), v(FB(mt, ks), 4), a(8 * ks + 4 * t, 4), v(c, 4)))
    EP = 112
    def epi_trans(mt):
        c, e = HH + 8 * mt, EP + 8 * mt
        o = ["v_exp_f32 v%d, v%d" % (e + i, c + i) for i in range(8)]
        o += ["v_add_f32 v%d, 1.0, v%d" % (e + i, e + i) for i in range(8)]
        o += ["v_rcp_f32 v%d, v%d" % (e + i, e + i) for i in range(8)]
        return o
    def epi_rest(mt):
        c, e, hu = HH + 8 * mt, EP + 8 * mt, HU + 8 * mt
        for i in range(4):
            A("v_pk_mul_f32 %s, %s, %s" % (v(e + 2 * i, 2), v(e + 2 * i, 2), v(c + 2 * i, 2)))
        for i in range(4):
            A("v_pk_fma_f32 %s, %s, s[%d:%d], %s" % (v(e + 2 * i, 2), v(e + 2 * i, 2), sK, sK + 1, v(hu + 2 * i, 2)))
        for r in range(4):
            A("v_cvt_pk_bf16_f32 v%d, v%d, v%d" % (e + r, e + r, e + 4 + r))
        for r in range(4):
            A("buffer_store_dword v%d, v3, s[%d:%d], 0 offen offset:%d%s" % (e + r, ST, ST + 3, 512 * r, NTO))
        if mt < 2:
            A("v_add_u32 v3, 8192, v3")
    rest = [(1, 7)] + [(2, ks) for ks in range(8)]
    for ks in range(8):
        A("s_waitcnt lgkmcnt(14)")
        fm(0, ks, 0)
        fm(0, ks, 1)
        m2, k2_ = rest[ks]
        A("ds_read_b128 %s, v14 offset:%d" % (v(FB(m2, k2_), 4), m2 * 16 * RS + k2_ * 64))
    A("ds_read_b128 %s, v14 offset:%d" % (v(FB(2, 7), 4), 2 * 16 * RS + 7 * 64))
    for mt in (1, 2):
        tr = epi_trans(mt - 1)
        for ks in range(8):
            A("s_waitcnt lgkmcnt(%d)" % (15 - 8 * (mt - 1) - ks))
            fm(mt, ks, 0)
            if ks >= 2:
                for x in tr[4 * (ks - 2):4 * (ks - 2) + 2]:
                    A(x)
            fm(mt, ks, 1)
            if ks >= 2:
                for x in tr[4 * (ks - 2) + 2:4 * (ks - 2) + 4]:
                    A(x)
        if mt == 2:
            epi_rest(0)
    epi_rest(1)
    for x in epi_trans(2):
        A(x)
    A("s_cmp_lt_u32 s%d, 3" % sW)
    A("s_cbranch_scc0 " + L("nopos"))
    A("v_lshrrev_b32 v4, 2, v0")
    A("v_and_b32 v5, 3, v0")
    A("v_lshlrev_b32 v5, 1, v5")
    A("v_lshl_add_u32 v6, v4, 3, v5")
    A("ds_read_u16 v8, v6 offset:%d" % (POSD - 2))
    possum(6, 7, 16)
    A("v_mad_u32_u24 v5, v4, 6, v5")
    A("v_add_u32 v5, -2, v5")
    A("v_cmp_gt_u32 vcc, s%d, v4" % sNB_)
    A("v_lshlrev_b32 v8, 16, v8")
    A("v_fma_f32 v8, v7, s%d, v8" % sK)
    A("v_cvt_pk_bf16_f32 v8, v8, v8")
    A("s_andn2_b64 exec, vcc, s[%d:%d]" % (sC0M, sC0M + 1))
    A("s_cbranch_execz " + L("nopos"))
    A("buffer_store_short v8, v5, s[%d:%d], 0 offen" % (SREC, SREC + 3))
    A.label(L("nopos"))
    A("s_mov_b64 exec, -1")
    epi_rest(2)
    if stamps:
        stamp()
        A("s_memrealtime s[52:53]")
        A("s_waitcnt lgkmcnt(0)")
        A("v_writelane_b32 v15, s52, 15")
        A("v_writelane_b32 v15, s12, 14")
        if "evtime" in X:
            A("v_writelane_b32 v15, s16, 16")
            A("v_writelane_b32 v15, s16, 17")
            A("v_writelane_b32 v15, s17, 18")
            A("s_sub_u32 s3, s%d, s%d" % (sTE, sTB))
            A("v_writelane_b32 v15, s3, 19")
        A("s_lshl_b32 s3, s2, 3")
        A("s_add_u32 s3, s3, s%d" % sW)
        A("s_lshl_b32 s3, s3, 8")
        A("s_add_u32 s3, s3, %d" % WS_STAMP)
        srd(A, ST, sWS, sWS + 1, 256, "s3")
        A("v_and_b32 v14, 63, v0")
        A("v_lshlrev_b32 v14, 2, v14")
        A("buffer_store_dword v15, v14, s[%d:%d], 0 offen" % (ST, ST + 3))
        if "ittime" in X:
            A("s_add_u32 s3, s3, %d" % (2 << 20))
            srd(A, ST, sWS, sWS + 1, 256, "s3")
            A("buffer_store_dword v11, v14, s[%d:%d], 0 offen" % (ST, ST + 3))
    A.label(L("end"))
    A("s_endpgm")

    A.label(L("late1"))
    wload(1, 0, 16)
    A("s_waitcnt vmcnt(0)")
    A("s_call_b64 s[%d:%d], %s" % (sRET2, sRET2 + 1, L("hh")))
    A.label(L("late2"))
    wload(2, 0, 16)
    A("s_branch " + L("wok"))

    A.label(L("slowprep"))
    A("s_max_u32 s3, s%d, s%d" % (sC, sC + 1))
    for g in range(2, 5):
        A("s_max_u32 s3, s3, s%d" % (sC + g))
    A("s_add_u32 s3, s3, %d" % (CAPW - 1))
    A("s_mul_hi_u32 s%d, s3, 0x%x" % (sNWIN, -(-(1 << 32) // CAPW)))
    A("s_waitcnt lgkmcnt(0)")
    A("s_mov_b32 s%d, 1" % sSLOW)
    for g in range(5):
        A("s_mov_b32 s%d, s%d" % (sCF + g, sC + g))
    A("s_barrier")
    A("v_mov_b32 v36, 0")
    A("v_mov_b32 v37, s%d" % sCF)
    A("s_add_u32 s3, s%d, s%d" % (sCF, sCF + 1))
    A("v_mov_b32 v38, s3")
    A("s_add_u32 s3, s3, s%d" % (sCF + 2))
    A("v_mov_b32 v39, s3")
    A("s_add_u32 s3, s3, s%d" % (sCF + 3))
    A("v_mov_b32 v40, s3")
    A("v_mov_b32 v41, 0")
    A("ds_write_b128 v33, v[36:39]")
    A("ds_write_b64 v33, v[40:41] offset:16")
    for i in range(4):
        A("v_mov_b32 v%d, 0" % (24 + i))
    A("v_lshlrev_b32 v29, 4, v0")
    A("v_add_u32 v29, %d, v29" % MB)
    A("ds_write_b128 v29, v[24:27]")
    A("ds_write_b128 v29, v[24:27] offset:8192")
    A("s_mov_b32 s3, %d" % ((40 * RS - 16384) // 16))
    A("v_cmp_gt_u32 vcc, s3, v0")
    A("s_and_saveexec_b64 s[%d:%d], vcc" % (sA, sA + 1))
    A("ds_write_b128 v29, v[24:27] offset:16384")
    A("s_mov_b64 exec, -1")
    A("s_waitcnt lgkmcnt(0)")
    A("s_barrier")
    A("v_and_b32 v36, 0xffff, v18")
    A("s_mov_b64 exec, s[%d:%d]" % (sC0M, sC0M + 1))
    A("ds_add_u32 v33, v36 offset:20")
    A("s_mov_b64 exec, -1")
    A("s_waitcnt lgkmcnt(0)")
    A("s_barrier")
    A("ds_read_b32 v36, v33 offset:20")
    A("s_waitcnt lgkmcnt(0)")
    A("v_readfirstlane_b32 s%d, v36" % sBASE)
    A.nop(2)
    A("s_lshl_b32 s%d, s%d, 3" % (sBASE, sBASE))
    srd(A, ST, sWS, sWS + 1, E * 8, WS_SORT)
    def sink_slow(k, r, g, rk, m):
        A("v_lshlrev_b32 v%d, 3, v%d" % (rk, rk))
        A("s_mov_b64 exec, s[%d:%d]" % (m, m + 1))
        A("buffer_store_dwordx2 %s, v%d, s[%d:%d], s%d offen" % (v(r, 2), rk, ST, ST + 3, sBASE))
        A("s_mov_b64 exec, -1")
    enum_tail("senum", sink_slow, 0)
    A("s_waitcnt vmcnt(0)")
    A("s_barrier")
    A("s_branch " + L("winfill"))

    A.label(L("nextwin"))
    A("s_add_u32 s%d, s%d, 1" % (sWIN, sWIN))
    A("s_cmp_eq_u32 s%d, s%d" % (sWIN, sNWIN))
    A("s_cbranch_scc1 " + L("final"))
    A("s_mov_b32 s%d, 2" % sSLOW)
    A("s_setprio 0")
    A("s_waitcnt vmcnt(0) lgkmcnt(0)")
    A("s_barrier")
    possum(28, 29, 32)
    A("s_mov_b32 s3, 160")
    A("v_cmp_gt_u32 vcc, s3, v0")
    A("s_and_saveexec_b64 s[%d:%d], vcc" % (sA, sA + 1))
    A("ds_write_b32 v28, v29")
    A("s_mov_b64 exec, -1")
    A("s_waitcnt lgkmcnt(0)")
    A("s_barrier")
    for i in range(4):
        A("v_mov_b32 v%d, 0" % (24 + i))
    A("v_lshlrev_b32 v29, 4, v0")
    A("v_add_u32 v29, %d, v29" % ZA0)
    nza = (ZA_END - ZA0) // 16
    A("s_mov_b32 s3, %d" % (nza % 512))
    for i in range(nza // 512):
        A("ds_write_b128 v29, v[24:27]")
        A("v_add_u32 v29, 8192, v29")
    A("v_cmp_gt_u32 vcc, s3, v0")
    A("s_and_saveexec_b64 s[%d:%d], vcc" % (sA, sA + 1))
    A("ds_write_b128 v29, v[24:27]")
    A("s_mov_b64 exec, -1")
    A("v_and_b32 v14, 63, v0")
    A.label(L("winfill"))
    srd(A, ST, sWS, sWS + 1, E * 8, WS_SORT)
    A("s_mul_i32 s%d, s%d, %d" % (sD, sWIN, CAPW))
    A("s_lshl_b32 s%d, s%d, 3" % (sA, sD))
    A("s_add_u32 s%d, s%d, s%d" % (sA, sA, sBASE))
    A("v_lshlrev_b32 v30, 3, v0")
    A("s_mov_b32 s%d, %d" % (sR0, CAPW))
    A("v_cmp_gt_u32 s[%d:%d], s%d, v0" % (sM, sM + 1, sR0))
    for g in range(5):
        A("s_max_u32 s3, s%d, s%d" % (sCF + g, sD))
        A("s_sub_u32 s3, s3, s%d" % sD)
        A("s_min_u32 s%d, s3, %d" % (sC + g, CAPW))
        A("buffer_load_dwordx2 %s, v30, s[%d:%d], s%d offen" % (v(36 + 2 * g, 2), ST, ST + 3, sA))
        A("s_lshl_b32 s3, s%d, 3" % (sCF + g))
        A("s_add_u32 s%d, s%d, s3" % (sA, sA))
    A("s_waitcnt vmcnt(0)")
    A("s_mov_b64 exec, s[%d:%d]" % (sM, sM + 1))
    for g in range(5):
        A("ds_write_b64 v30, %s offset:%d" % (v(36 + 2 * g, 2), COMP + g * CAP * 8))
    A("s_mov_b64 exec, -1")
    A("s_waitcnt lgkmcnt(0)")
    A("s_barrier")
    A("s_branch " + L("build"))
    return dict(vgpr=NV, sgpr=102, agpr=64)
```

```python
import sys, subprocess
from common import *
import gen
M = 4
def probe(which):
    o = []
    A = o.append
    A("s_memrealtime s[20:21]")
    A("s_cmp_ge_u32 s2, 1"); A("s_cbranch_scc1 pr_end")
    A("s_load_dwordx2 s[4:5], s[0:1], 80")
    A("v_lshlrev_b32 v1, 10, v0")
    A("v_lshlrev_b32 v2, 11, v0")
    A("s_waitcnt lgkmcnt(0)")
    A("s_add_u32 s8, s4, %d" % (WS_STAMP + (1 << 20))); A("s_addc_u32 s9, s5, 0"); A("s_mov_b32 s10, 0x100000"); A("s_mov_b32 s11, 0x20000")
    A("s_add_u32 s12, s4, %d" % WS_STAMP); A("s_addc_u32 s13, s5, 0"); A("s_mov_b32 s14, 0x100000"); A("s_mov_b32 s15, 0x20000")
    A("s_mov_b32 s16, %d" % (112 * 1024))
    A("buffer_load_dwordx2 v[4:5], v1, s[8:11], 0 offen offset:56")
    A("buffer_load_dwordx2 v[6:7], v1, s[8:11], s16 offen offset:56")
    A("buffer_load_dwordx2 v[8:9], v2, s[12:15], 0 offen offset:56")
    A("buffer_load_dword v10, v2, s[12:15], 0 offen offset:80")
    A("buffer_load_dword v11, v2, s[12:15], 0 offen offset:84")
    A("s_waitcnt vmcnt(0)")
    A("v_min_u32 v4, v4, v6"); A("v_max_u32 v5, v5, v7")
    A("v_lshlrev_b32 v12, 2, v0")
    A("v_mov_b32 v13, -1"); A("v_mov_b32 v14, 0"); A("v_mov_b32 v15, 0")
    A("ds_write_b32 v15, v13"); A("ds_write_b32 v15, v14 offset:4"); A("ds_write_b32 v15, v13 offset:8"); A("ds_write_b32 v15, v14 offset:12"); A("ds_write_b32 v15, v14 offset:16"); A("ds_write_b32 v15, v14 offset:20")
    A("s_waitcnt lgkmcnt(0)"); A("s_barrier")
    A("ds_min_u32 v15, v4"); A("ds_max_u32 v15, v5 offset:4"); A("ds_min_u32 v15, v8 offset:8"); A("ds_max_u32 v15, v9 offset:12"); A("ds_max_u32 v15, v10 offset:16"); A("ds_max_u32 v15, v11 offset:20")
    A("s_waitcnt lgkmcnt(0)"); A("s_barrier")
    A("ds_read_b128 v[4:7], v15"); A("ds_read_b64 v[8:9], v15 offset:16"); A("s_waitcnt lgkmcnt(0)")
    for i in range(6):
        A("v_readfirstlane_b32 s%d, v%d" % (24 + i, 4 + i))
    A("s_nop 3")
    a, b = {"none": (24, 24), "k1": (25, 24), "gap": (26, 25), "k2": (27, 26), "pro": (28, 26), "str": (29, 28), "end": (20, 27)}[which]
    A("s_sub_u32 s30, s%d, s%d" % (a, b))
    A("s_min_u32 s30, s30, 5000")
    A("s_mul_i32 s30, s30, %d" % M)
    A("s_memrealtime s[22:23]"); A("s_waitcnt lgkmcnt(0)")
    A("pr_l:")
    A("s_memrealtime s[32:33]"); A("s_waitcnt lgkmcnt(0)")
    A("s_sub_u32 s32, s32, s22"); A("s_cmp_lt_u32 s32, s30"); A("s_cbranch_scc1 pr_l")
    A("pr_end:"); A("s_endpgm")
    return "\n".join(l if l.endswith(":") else "    " + l for l in o) + "\n"
X = [x[4:] for x in sys.argv if x.startswith("--x=")]
base, _ = gen.build(True, X)
for w in ("none", "k1", "gap", "k2", "pro", "str", "end"):
    t = base.replace('.amdgcn_target', '; @launch kernel=egnn_probe_kernel grid=(1,1,1) block=(256,1,1) lds=64\n.amdgcn_target', 1)
    t = t.replace('.section .rodata,"a"\n', ".globl egnn_probe_kernel\n.p2align 8\n.type egnn_probe_kernel,@function\negnn_probe_kernel:\n" + probe(w) + '.section .rodata,"a"\n')
    t += ".p2align 6\n.amdhsa_kernel egnn_probe_kernel\n  .amdhsa_next_free_vgpr 16\n  .amdhsa_next_free_sgpr 48\n  .amdhsa_accum_offset 16\n  .amdhsa_group_segment_fixed_size 0\n  .amdhsa_kernarg_size 88\n  .amdhsa_user_sgpr_count 2\n  .amdhsa_user_sgpr_kernarg_segment_ptr 1\n  .amdhsa_system_sgpr_workgroup_id_x 1\n.end_amdhsa_kernel\n"
    open("pr_%s.s" % w, "w").write(t)
```

```python
import sys, subprocess
from common import *
import gen
M = 4
def probe(which):
    o = []
    A = o.append
    A("s_memrealtime s[20:21]")
    A("s_cmp_ge_u32 s2, 1"); A("s_cbranch_scc1 pr_end")
    A("s_load_dwordx2 s[4:5], s[0:1], 80")
    A("v_lshlrev_b32 v1, 10, v0")
    A("v_lshlrev_b32 v2, 11, v0")
    A("s_waitcnt lgkmcnt(0)")
    A("s_add_u32 s8, s4, %d" % (WS_STAMP + (1 << 20))); A("s_addc_u32 s9, s5, 0"); A("s_mov_b32 s10, 0x100000"); A("s_mov_b32 s11, 0x20000")
    A("s_add_u32 s12, s4, %d" % WS_STAMP); A("s_addc_u32 s13, s5, 0"); A("s_mov_b32 s14, 0x100000"); A("s_mov_b32 s15, 0x20000")
    A("s_mov_b32 s16, %d" % (128 * 1024))
    A("buffer_load_dwordx2 v[4:5], v1, s[8:11], 0 offen offset:56")
    A("buffer_load_dwordx2 v[6:7], v1, s[8:11], s16 offen offset:56")
    A("buffer_load_dwordx2 v[8:9], v2, s[12:15], 0 offen offset:56")
    A("buffer_load_dword v10, v2, s[12:15], 0 offen offset:80")
    A("buffer_load_dword v11, v2, s[12:15], 0 offen offset:88")
    A("s_waitcnt vmcnt(0)")
    A("v_min_u32 v4, v4, v6"); A("v_max_u32 v5, v5, v7")
    A("v_lshlrev_b32 v12, 2, v0")
    A("v_mov_b32 v13, -1"); A("v_mov_b32 v14, 0"); A("v_mov_b32 v15, 0")
    A("ds_write_b32 v15, v13"); A("ds_write_b32 v15, v14 offset:4"); A("ds_write_b32 v15, v13 offset:8"); A("ds_write_b32 v15, v14 offset:12"); A("ds_write_b32 v15, v14 offset:16"); A("ds_write_b32 v15, v13 offset:20")
    A("s_waitcnt lgkmcnt(0)"); A("s_barrier")
    A("ds_min_u32 v15, v4"); A("ds_max_u32 v15, v5 offset:4"); A("ds_min_u32 v15, v8 offset:8"); A("ds_max_u32 v15, v9 offset:12"); A("ds_max_u32 v15, v10 offset:16"); A("ds_min_u32 v15, v11 offset:20")
    A("s_waitcnt lgkmcnt(0)"); A("s_barrier")
    A("ds_read_b128 v[4:7], v15"); A("ds_read_b64 v[8:9], v15 offset:16"); A("s_waitcnt lgkmcnt(0)")
    for i in range(6):
        A("v_readfirstlane_b32 s%d, v%d" % (24 + i, 4 + i))
    A("s_nop 3")
    a, b = {"none": (24, 24), "k1": (25, 24), "gap": (26, 25), "k2": (27, 26), "pro": (28, 26), "gap0": (29, 25), "karg": (26, 29), "end": (20, 27)}[which]
    A("s_sub_u32 s30, s%d, s%d" % (a, b))
    A("s_min_u32 s30, s30, 5000")
    A("s_mul_i32 s30, s30, %d" % M)
    A("s_memrealtime s[22:23]"); A("s_waitcnt lgkmcnt(0)")
    A("pr_l:")
    A("s_memrealtime s[32:33]"); A("s_waitcnt lgkmcnt(0)")
    A("s_sub_u32 s32, s32, s22"); A("s_cmp_lt_u32 s32, s30"); A("s_cbranch_scc1 pr_l")
    A("pr_end:"); A("s_endpgm")
    return "\n".join(l if l.endswith(":") else "    " + l for l in o) + "\n"
X = [x[4:] for x in sys.argv if x.startswith("--x=")]
base, _ = gen.build(True, X)
for w in ("none", "k1", "gap", "k2", "pro", "gap0", "karg", "end"):
    t = base.replace('.amdgcn_target', '; @launch kernel=egnn_probe_kernel grid=(1,1,1) block=(256,1,1) lds=64\n.amdgcn_target', 1)
    t = t.replace('.section .rodata,"a"\n', ".globl egnn_probe_kernel\n.p2align 8\n.type egnn_probe_kernel,@function\negnn_probe_kernel:\n" + probe(w) + '.section .rodata,"a"\n')
    t += ".p2align 6\n.amdhsa_kernel egnn_probe_kernel\n  .amdhsa_next_free_vgpr 16\n  .amdhsa_next_free_sgpr 48\n  .amdhsa_accum_offset 16\n  .amdhsa_group_segment_fixed_size 0\n  .amdhsa_kernarg_size 88\n  .amdhsa_user_sgpr_count 2\n  .amdhsa_user_sgpr_kernarg_segment_ptr 1\n  .amdhsa_system_sgpr_workgroup_id_x 1\n.end_amdhsa_kernel\n"
    open("pr_%s.s" % w, "w").write(t)
```
